```python
import torch

def _softmax(x, axis=-1):
    return torch.softmax(x, dim=axis)

def _gelu(x):
    return torch.nn.functional.gelu(x, approximate='tanh')

def _silu(x):
    return torch.nn.functional.silu(x)

def _sigmoid(x):
    return torch.sigmoid(x)

def _layernorm(x, axis=-1, eps=1e-05):
    m = x.mean(dim=axis, keepdim=True)
    v = x.var(dim=axis, keepdim=True, unbiased=False)
    return (x - m) / torch.sqrt(v + eps)

def _scatter_add(tgt, idx, src, axis=0):
    return tgt.clone().index_add_(axis, idx, src)

def _segment_sum(src, seg, n):
    out = torch.zeros((n,) + src.shape[1:], dtype=src.dtype)
    return out.index_add_(0, seg, src)

def _pad(x, pw):
    flat = tuple((v for pair in reversed(pw) for v in pair))
    return torch.nn.functional.pad(x, flat)
kernel_name = 'adaLN_cond__mha_block_cached__mixer_s_mlp__prompt'

def setup_inputs():

    _w = lambda a: (lambda t: t.to(torch.bfloat16) if t.is_floating_point() else t)(torch.as_tensor(a))

    def _A_setup():
        B, Sq, D = (1, 2048, 640)
        H, Sk, Dh = (32, 2048, 192)
        return {'x': _w((lambda *s: torch.randn(*s, dtype=torch.bfloat16) * 0.1)(B, Sq, D)), 'k_cache': _w((lambda *s: torch.randn(*s, dtype=torch.bfloat16) * 0.8)(B, H, Sk, Dh)), 'v_cache': _w((lambda *s: torch.randn(*s, dtype=torch.bfloat16) * 0.8)(B, H, Sk, Dh)), 'wq': _w((lambda *s: torch.randn(*s, dtype=torch.bfloat16) * 0.8)(D, H * Dh) * D ** (-0.5)), 'wo': _w((lambda *s: torch.randn(*s, dtype=torch.bfloat16) * 0.8)(H * Dh, D) * (H * Dh) ** (-0.5))}
    _A_in = _A_setup()

    def _B_setup():
        B, S, D, F = (1, 2048, 640, 1536)
        return {'x': _w((lambda *s: torch.randn(*s, dtype=torch.bfloat16) * 0.1)(B, S, D)), 'w1': _w((lambda *s: torch.randn(*s, dtype=torch.bfloat16) * 3.2)(D, D) * D ** (-0.5)), 'w2': _w((lambda *s: torch.randn(*s, dtype=torch.bfloat16) * 3.2)(D, D) * D ** (-0.5)), 'w3': _w((lambda *s: torch.randn(*s, dtype=torch.bfloat16) * 3.2)(D, F) * D ** (-0.5)), 'w4': _w((lambda *s: torch.randn(*s, dtype=torch.bfloat16) * 3.2)(F, D) * F ** (-0.5))}
    _B_in = _B_setup()
    return {'A_x': _A_in['x'], 'A_k_cache': _A_in['k_cache'], 'A_v_cache': _A_in['v_cache'], 'A_wq': _A_in['wq'], 'A_wo': _A_in['wo'], 'B_x': _B_in['x'], 'B_w1': _B_in['w1'], 'B_w2': _B_in['w2'], 'B_w3': _B_in['w3'], 'B_w4': _B_in['w4'], 'c': _w((lambda *s: torch.randn(*s, dtype=torch.bfloat16) * 0.2)(1, 640) * 8.0), 'w_mod': _w((lambda *s: torch.randn(*s, dtype=torch.bfloat16) * 0.2)(640, 6 * 640) * 640 ** (-0.5) * 8.0)}

def reference(A_x, A_k_cache, A_v_cache, A_wq, A_wo, B_x, B_w1, B_w2, B_w3, B_w4, c, w_mod):

    def _A_ref(x, k_cache, v_cache, wq, wo):
        B, Sq, D = x.shape
        H, Dh = (32, 192)
        q = (lambda x, *d: x.permute(*d))((x @ wq).reshape(B, Sq, H, Dh), 0, 2, 1, 3)
        scores = torch.einsum('bhqd,bhkd->bhqk', q, k_cache) * Dh ** (-0.5)
        p = _softmax(scores, axis=-1)
        o = torch.einsum('bhqk,bhkd->bhqd', p, v_cache)
        return (lambda x, *d: x.permute(*d))(o, 0, 2, 1, 3).reshape(B, Sq, H * Dh) @ wo

    def _B_ref(x, w1, w2, w3, w4):
        B, S, D = x.shape
        h = _gelu(_layernorm(x, axis=-1) @ w1)
        c = D // 4
        g0 = _pad(h[:, :, 0 * c:1 * c], ((0, 0), (1, 0), (0, 0)))[:, :S, :]
        g1 = _pad(h[:, :, 1 * c:2 * c], ((0, 0), (0, 1), (0, 0)))[:, 1:, :]
        g2 = _pad(h[:, :, 2 * c:3 * c], ((0, 0), (2, 0), (0, 0)))[:, :S, :]
        g3 = _pad(h[:, :, 3 * c:], ((0, 0), (0, 2), (0, 0)))[:, 2:, :]
        hs = torch.concatenate([g0, g1, g2, g3], axis=-1) @ w2
        x1 = x + hs
        h2 = _gelu(_layernorm(x1, axis=-1) @ w3) @ w4
        return x1 + h2
    x = A_x
    mod = (_silu(c) @ w_mod).reshape(c.shape[0], 6, 1, -1)
    sa, ca, ga, sb, cb, gb = (mod[:, 0].clone(), mod[:, 1].clone(), mod[:, 2].clone(), mod[:, 3].clone(), mod[:, 4].clone(), mod[:, 5].clone())
    h = _layernorm(x, axis=-1) * (1 + ca) + sa
    x = x + ga * _A_ref(h, A_k_cache, A_v_cache, A_wq, A_wo)
    h = _layernorm(x, axis=-1) * (1 + cb) + sb
    x = x + gb * _B_ref(h, B_w1, B_w2, B_w3, B_w4)
    return x
```

```python
import re

class Asm:
    def __init__(self):
        self.lines = []
        self.vmq = []
        self.lgq = []
    def __call__(self, s):
        for l in s.split("\n"):
            self.lines.append(l)
    def text(self):
        return "\n".join(self.lines) + "\n"
    def vm(self, s, tag):
        self(s); self.vmq.append(tag)
    def ds(self, s, tag):
        self(s); self.lgq.append(tag)
    def _need(self, q, tags):
        if not isinstance(tags, (list, tuple, set)): tags = [tags]
        last = -1
        for i, t in enumerate(q):
            if t in tags: last = i
        if last < 0: return None
        return len(q) - 1 - last
    def wait(self, vm=None, lg=None, force=False):
        parts = []
        if vm is not None:
            n = (0 if self.vmq else None) if vm == 0 else self._need(self.vmq, vm)
            if vm == 0 and force: n = 0
            if n is not None:
                n = min(n, 63)
                parts.append(f"vmcnt({n})"); self.vmq = self.vmq[len(self.vmq) - n:] if n else []
        if lg is not None:
            n = (0 if self.lgq else None) if lg == 0 else self._need(self.lgq, lg)
            if lg == 0 and force: n = 0
            if n is not None:
                n = min(n, 15)
                parts.append(f"lgkmcnt({n})"); self.lgq = self.lgq[len(self.lgq) - n:] if n else []
        if parts:
            self("s_waitcnt " + " ".join(parts))
            return True
        return False

def kernel_desc(name, vgpr, sgpr=102, accum=None, extra=""):
    if accum is None: accum = (vgpr + 3) // 4 * 4
    return f""".section .rodata,"a"
.p2align 6
.amdhsa_kernel {name}
  .amdhsa_next_free_vgpr {vgpr}
  .amdhsa_next_free_sgpr {sgpr}
  .amdhsa_accum_offset {accum}
  .amdhsa_group_segment_fixed_size 0
  .amdhsa_kernarg_size 120
  .amdhsa_user_sgpr_count 2
  .amdhsa_user_sgpr_kernarg_segment_ptr 1
  .amdhsa_system_sgpr_workgroup_id_x 1
{extra}.end_amdhsa_kernel
"""
def kernel_head(name):
    return f""".text
.globl {name}
.p2align 8
.type {name},@function
{name}:
"""

def vr(b, n=1, f='v'):
    return f"{f}{b}" if n == 1 else f"{f}[{b}:{b+n-1}]"

_REG = re.compile(r'(?<![\w])([vas])(?:(\d+)|\[(\d+):(\d+)\])(?![\w])')
def regs_of(tok):
    out = set()
    for m in _REG.finditer(tok):
        f = m.group(1)
        if m.group(2) is not None: out.add((f, int(m.group(2))))
        else:
            for i in range(int(m.group(3)), int(m.group(4)) + 1): out.add((f, i))
    for n in ('vcc', 'exec', 'm0'):
        if re.search(r'(?<![\w])' + n + r'(?![\w])', tok): out.add(('s', n))
    return out
TRANS = ('v_exp_f32', 'v_log_f32', 'v_rcp_f32', 'v_rsq_f32', 'v_sqrt_f32', 'v_sin_f32', 'v_cos_f32')
class Ins:
    def __init__(self, line, num):
        self.line = line; self.num = num
        s = line.split(';')[0].strip()
        p = s.split(None, 1)
        self.op = p[0]
        ops = [x.strip() for x in p[1].split(',')] if len(p) > 1 else []
        self.ops = ops
        op = self.op
        self.kind = 'other'
        self.d = set(); self.u = set(); self.c = set(); self.ab = set()
        self.states = 1
        if op == 's_nop': self.states = int(ops[0], 0) + 1
        if op.startswith('v_mfma'):
            self.kind = 'mfma'
            self.d = regs_of(ops[0]); self.ab = regs_of(ops[1]) | regs_of(ops[2]); self.c = regs_of(ops[3]); self.u = self.ab | self.c
            self.passes = 4 if '16x16x32' in op else 8
        elif op.startswith('v_'):
            self.kind = 'valu'
            if op.startswith('v_cmp'):
                self.d = regs_of(ops[0]); self.u = set().union(*[regs_of(x) for x in ops[1:]])
                if op.startswith('v_cmpx'): self.d |= {('s', 'exec')}
            elif op.startswith('v_permlane') and 'swap' in op:
                self.d = regs_of(ops[0]) | regs_of(ops[1]); self.u = set(self.d)
            else:
                self.d = regs_of(ops[0]); rest = ops[1:]
                if '_co_' in op: self.d |= regs_of(ops[1]); rest = ops[2:]
                self.u = set().union(*[regs_of(x) for x in rest]) if rest else set()
                if op.startswith(('v_fmac', 'v_mac', 'v_dot2c', 'v_pk_fmac', 'v_writelane')) or 'dpp' in s or 'row_' in s or 'quad_perm' in s: self.u |= self.d
            self.dpp = ('row_' in s or 'quad_perm' in s or 'wave_' in s)
        elif op.startswith('ds_'):
            self.kind = 'ds'
            if op.startswith(('ds_read', 'ds_bpermute', 'ds_permute', 'ds_swizzle')):
                self.d = regs_of(ops[0]); self.u = set().union(*[regs_of(x) for x in ops[1:]])
            else:
                self.u = set().union(*[regs_of(x) for x in ops])
        elif op.startswith(('buffer_', 'global_')):
            self.kind = 'vmem'
            self.lds = bool(re.search(r'\blds\b', s)) or '_lds_' in op
            allr = [regs_of(x) for x in ops]
            if 'load' in op and not self.lds:
                self.d = allr[0]; self.u = set().union(*allr[1:])
            else:
                self.u = set().union(*allr)
                if self.lds: self.u |= {('s', 'm0')}
            self.store = 'store' in op or 'atomic' in op
            self.wide = self.store and ('x3' in op or 'x4' in op)
            if self.wide:
                self.sdata = allr[0] if op.startswith('buffer_') else allr[1]
        elif op.startswith('s_'):
            self.kind = 'salu'
            if op.startswith(('s_cmp', 's_waitcnt', 's_nop', 's_barrier', 's_cbranch', 's_branch', 's_endpgm', 's_setprio', 's_sleep')):
                self.u = set().union(*[regs_of(x) for x in ops]) if ops else set()
            else:
                self.d = regs_of(ops[0]) if ops else set(); self.u = set().union(*[regs_of(x) for x in ops[1:]]) if len(ops) > 1 else set()
                if 'saveexec' in op: self.d |= {('s', 'exec')}

def parse(lines):
    out = []
    for n, l in enumerate(lines):
        s = l.split(';')[0].strip()
        if not s or s.startswith('.') or s.endswith(':'): continue
        out.append(Ins(l, n))
    return out

def check_hazards(lines, name=""):
    ins = parse(lines)
    errs = []
    W = 24
    for i, c in enumerate(ins):
        dist = 0
        for j in range(i - 1, max(-1, i - W), -1):
            p = ins[j]
            need = 0; why = ''
            vd = {r for r in p.d if r[0] in 'va'}
            sd = {r for r in p.d if r[0] == 's'}
            if p.kind == 'mfma':
                P = p.passes
                raw = {4: 8, 8: 12}[P]; ovl = {4: 6, 8: 10}[P]; war = {4: 3, 8: 7}[P]
                if c.kind == 'mfma':
                    if p.d & c.ab: need, why = raw, 'mfma D->AB'
                    elif p.d & c.c and not (p.d == c.c and c.passes == P): need, why = ovl, 'mfma D->C overlap'
                    elif (p.d & c.d) and not (p.d == c.c): need, why = ovl, 'mfma D->D waw (conservative)'
                elif c.kind in ('valu', 'ds', 'vmem'):
                    if p.d & (c.u | c.d): need, why = raw, 'mfma D->valu/mem'
                    elif c.kind == 'valu' and (p.c & c.d): need, why = war, 'mfma C war'
            elif p.kind == 'valu':
                if c.kind == 'mfma' and vd & c.u: need, why = 2, 'valu->mfma'
                if c.kind == 'mfma' and ('s', 'exec') in sd: need, why = 4, 'valu exec->mfma'
                if c.kind == 'valu':
                    if p.op in TRANS or p.op.replace('_e32', '').replace('_e64', '') in TRANS:
                        if vd & c.u and not (c.op.replace('_e32', '').replace('_e64', '') in TRANS): need, why = max(need, 1), 'trans->valu'
                    if c.op.startswith('v_permlane') and vd & c.u: need, why = 2, 'valu->permlane'
                    if getattr(c, 'dpp', False) and vd & c.u: need, why = 2, 'valu->dpp'
                    if c.op.startswith(('v_readlane', 'v_readfirstlane')) and vd & c.u: need, why = max(need, 1), 'valu->readlane'
                    if sd & c.u: need, why = max(need, 2), 'valu sgpr->valu'
                    if c.op.startswith('v_div_fmas') and ('s', 'vcc') in sd: need, why = 4, 'vcc->div_fmas'
                if c.kind == 'vmem' and sd & c.u: need, why = 5, 'valu sgpr->vmem'
            elif p.kind == 'salu':
                if ('s', 'm0') in p.d and c.kind == 'vmem' and getattr(c, 'lds', False): need, why = 1, 'm0->lds dma'
            elif p.kind == 'vmem':
                if getattr(p, 'wide', False) and (p.sdata & c.d): need, why = (2 if c.kind in ('valu', 'mfma') else 1), 'wide store war'
            if need > dist:
                errs.append(f"{name} hazard {why}: need {need} have {dist}\n    L{p.num}: {p.line.strip()}\n    L{c.num}: {c.line.strip()}")
            dist += p.states
            if dist >= 20: break
    return errs
```

```python
import math, struct
from asmlib import *
from sched import *
from layout import *

def f2u(x): return struct.unpack("<I", struct.pack("<f", x))[0]

vK = [2, 3]; vV = [4, 5, 6, 7]; vOffK = 8; vOffV = 9; vOffW = 10; vLane16 = 11
vL = [12, 13, 14, 15]; vLt = [16, 17, 18, 19]
vT = list(range(20, 32))
NM = 32; SB = [48, 52, 56, 60]; PB = [64, 96]; KF = [128, 152]; VF = [176, 184]
SB_PRE = [48, 52, 56, 60, 208, 212, 216, 220]
WF = [32, 40]
def Qf(qb, ks):
    if ks == 4: return vr(192 + 4*qb, 4)
    if ks == 5: return vr(224 + 4*qb, 4)
    return vr(192 + 4*(qb*4 + ks), 4, 'a')
def Ot(dt, qb): return vr(4*(dt*4 + qb), 4, 'a')
def QAcc(dt, qb): return 64 + 4*(dt*4 + qb)
sH, sW, sK, sV, sO = 8, 12, 16, 20, 24
sWave, sLds, sK0, sK1, sV0, sV1, sThr, sCnt, sT0, sT1 = 28, 29, 32, 33, 34, 35, 36, 37, 38, 39
sRet = 30
sScale = 40
sOo = [42, 43, 44, 45]
sHead, sQb = 46, 47
sTS = 48
LK = [0, 24576]; LV = [49152, 73728]
LDS_BYTES = 147456
MF = "v_mfma_f32_16x16x32_bf16"
THR = 16384.0

class Cfg:
    def __init__(self, **kw):
        self.stamps = False; self.qstamps = False; self.budget = 8; self.sum = 'add'
        self.no_sm = False; self.no_dma = False; self.no_lds = False; self.no_bar = False
        self.dma_gap = 7; self.dma_start = 2; self.dma_cost = 8
        self.__dict__.update(kw)

def stamp(a, cfg, i):
    if cfg.stamps:
        a(f"s_memtime s[{sTS+4*i}:{sTS+4*i+1}]")
        a(f"s_memrealtime s[{sTS+4*i+2}:{sTS+4*i+3}]")
        a.lgq.append('stamp'); a.wait(lg=0)

def qstamp(a, i):
    a(f"s_memtime s[6:7]")
    a.lgq.append('stamp'); a.wait(lg=0)
    a(f"s_mov_b32 s{72+i}, s6")

def dma(a, voff, srd, soff, ldsoff, t, tag):
    a(f"s_add_u32 m0, s{sLds}, {ldsoff + t*896}")
    a("s_nop 0")
    a.vm(f"buffer_load_dwordx4 v{voff}, s[{srd}:{srd+3}], s{soff} offen offset:{t*128} lds", tag)

def dma_items(voff, srd, soffs, ldsbase, tag, early, gap, dead, cost=8):
    out = []
    for j in range(6):
        u, t = j // 3, j % 3
        def f1(a, u=u, t=t): a(f"s_add_u32 m0, s{sLds}, {ldsbase + u*12288 + t*896}")
        def f2(a, u=u, t=t):
            last = a.lines[-1].strip()
            if last.startswith("s_add_u32 m0"): a("s_nop 0")
            a.vm(f"buffer_load_dwordx4 v{voff}, s[{srd}:{srd+3}], s{soffs[u]} offen offset:{t*128} lds", tag)
        if dead is None:
            out.append(Item(f1, 4, early + j*gap - 2, early + j*gap))
            out.append(Item(f2, cost, early + j*gap + 1, early + j*gap + 1))
            continue
        out.append(Item(f1, 4, early + j*gap, dead))
        out.append(Item(f2, cost, early + j*gap + 1, dead))
    return out

def kread(slot, kb, ks):
    def f(a): a.ds(f"ds_read_b128 {vr(KF[kb&1]+4*ks,4)}, v{vK[ks&1]} offset:{LK[slot] + kb*6144 + (ks>>1)*1024}", ('K', kb&1, ks))
    return f
def vread(addr, base, dst, dt, k2, j2):
    def f(a): a.ds(f"ds_read_b64_tr_b16 {vr(dst[dt&1]+4*k2+2*j2,2)}, v{addr[dt&3]} offset:{base + (2*k2+j2)*6144 + (dt>>2)*1024}", ('V', dt&1, k2))
    return f
def vreads(addr, base, dst, dt, early, dead):
    return [Item(vread(addr, base, dst, dt, k2, j2), 4, early, dead) for k2 in range(2) for j2 in range(2)]

def sm_items(cfg, n, S, pw, after_m, dead, first_kb):
    kb, qb = n >> 2, n & 3
    P = PB[pw] + 8*qb + 4*(kb >> 1) + 2*(kb & 1)
    lt = vLt[qb]
    def T(s, c=4, after=None): return Item(lambda a: a(s), c, 0, dead, after)
    e = [f"v_exp_f32 v{S+r}, v{S+r}" for r in range(4)]
    it = [T(e[0], 8, after_m), T(e[1], 8)]
    if cfg.sum == 'add':
        if first_kb:
            it += [T(e[2], 8), T(f"v_add_f32 v{lt}, v{S}, v{S+1}"), T(f"v_cvt_pk_bf16_f32 v{P}, v{S}, v{S+1}"), T(e[3], 8),
                   T(f"v_add_f32 v{lt}, v{lt}, v{S+2}"), T(f"v_add_f32 v{lt}, v{lt}, v{S+3}"), T(f"v_cvt_pk_bf16_f32 v{P+1}, v{S+2}, v{S+3}")]
        else:
            it += [T(f"v_add_f32 v{lt}, v{lt}, v{S}"), T(e[2], 8), T(f"v_add_f32 v{lt}, v{lt}, v{S+1}"), T(f"v_cvt_pk_bf16_f32 v{P}, v{S}, v{S+1}"), T(e[3], 8),
                   T(f"v_add_f32 v{lt}, v{lt}, v{S+2}"), T(f"v_add_f32 v{lt}, v{lt}, v{S+3}"), T(f"v_cvt_pk_bf16_f32 v{P+1}, v{S+2}, v{S+3}")]
    elif cfg.sum == 'dot2':
        d = lambda p, init: (f"v_dot2_f32_bf16 v{lt}, v{p}, s{sT1}, 0" if init else f"v_dot2c_f32_bf16 v{lt}, s{sT1}, v{p}")
        it += [T(e[2], 8), T(f"v_cvt_pk_bf16_f32 v{P}, v{S}, v{S+1}"), T(e[3], 8), T(d(P, first_kb)),
               T(f"v_cvt_pk_bf16_f32 v{P+1}, v{S+2}, v{S+3}"), T("s_nop 0"), T(d(P+1, False))]
    elif cfg.sum == 'none':
        it += [T(e[2], 8), T(f"v_cvt_pk_bf16_f32 v{P}, v{S}, v{S+1}"), T(e[3], 8), T("s_nop 0"), T(f"v_cvt_pk_bf16_f32 v{P+1}, v{S+2}, v{S+3}")]
    return it

def check(a, label, pw, stubs):
    a(f"v_max3_f32 v{vT[0]}, v{vLt[0]}, v{vLt[1]}, v{vLt[2]}")
    a(f"v_max_f32 v{vT[0]}, v{vT[0]}, v{vLt[3]}")
    a(f"v_cmp_lt_f32 vcc, s{sThr}, v{vT[0]}")
    stubs.append((label, pw))

def step(a, cfg, kind, par, label, stubs, first=False, dmaK=True, dmaV=True):
    bb = []; qk_end = {}; qk_start = {}; pv_start = {}
    def add_qk(n):
        kb, qb = n >> 2, n & 3; S = SB[n & 3]
        qk_start[n] = len(bb)
        for ks in range(6):
            C = vr(NM + 4*qb, 4) if ks == 0 else vr(S, 4)
            bb.append(BB(f"{MF} {vr(S,4)}, {vr(KF[kb&1]+4*ks,4)}, {Qf(qb,ks)}, {C}", need_lg=[('K', kb&1, k) for k in range(ks//3*3+3)]))
        qk_end[n] = len(bb) - 1
    def add_pv(c):
        dt, qb = c >> 2, c & 3
        pv_start[c] = len(bb)
        for k2 in range(2):
            C = "0" if (first and k2 == 0) else Ot(dt, qb)
            bb.append(BB(f"{MF} {Ot(dt,qb)}, {vr(VF[dt&1]+4*k2,4)}, {vr(PB[par]+8*qb+4*k2,4)}, {C}", need_lg=[('V', dt&1, 0), ('V', dt&1, 1)]))
    if kind == 'mix':
        add_qk(0)
        for n in range(1, 16):
            add_qk(n)
            for c in range(3*(n-1), 3*n): add_pv(c)
        for c in range(45, 48): add_pv(c)
    else:
        for c in range(48): add_pv(c)
    M = len(bb)
    streams = []
    streams.append([Item((lambda a, q=q: a(f"v_add_f32 v{vL[q]}, v{vL[q]}, v{vLt[q]}")), 4, 0, 8) for q in range(4)])
    vbase = LV[par] - LV[0]
    vs = []
    for dt in range(1, 12):
        early = 0 if dt == 1 else pv_start[4*(dt-2)+3] + 1
        vs += vreads(vV, vbase, VF, dt, early, pv_start[4*dt] - 6)
    if kind == 'mix':
        X = qk_end[15]
        sm = []
        for n in range(16):
            dead = qk_start[n+4] - 1 if n + 4 < 16 else M - 3
            if not cfg.no_sm: sm += sm_items(cfg, n, SB[n & 3], par ^ 1, (qk_end[n], 8), dead, n < 4)
        if not cfg.no_sm:
            sm.append(Item(lambda a: check(a, label, par ^ 1, stubs), 12, 0, M - 1))
        streams.append(sm)
        ks_ = []
        for kb in range(1, 4):
            e0 = 0 if kb == 1 else qk_end[4*(kb-2)+3]
            for ks in range(6):
                ks_.append(Item(kread(par ^ 1, kb, ks), 4, e0 + 6*ks, qk_start[4*kb] - 8))
        def xbar(a):
            a.wait(vm=0, lg=0)
            if not cfg.no_bar: a("s_barrier")
        vs.append(Item(xbar, 8, X, X))
        for ks in range(6): vs.append(Item(kread(par, 0, ks), 4, X + 1 + ks, X + 2 + ks))
        vs += vreads(vV, LV[par ^ 1] - LV[0], VF, 0, pv_start[43] + 1, M - 2)
        streams.append(ks_)
        d = []
        if dmaK and not cfg.no_dma: d += dma_items(vOffK, sK, [sK0, sK1], LK[par], 'dK', cfg.dma_start, cfg.dma_gap, None, cfg.dma_cost)
        if dmaV and not cfg.no_dma: d += dma_items(vOffV, sV, [sV0, sV1], LV[par ^ 1], 'dV', cfg.dma_start + 6*cfg.dma_gap, cfg.dma_gap, None, cfg.dma_cost)
        for s in (sK1, sV0, sV1):
            d.append(Item((lambda a, s=s: a(f"s_add_u32 s{s}, s{s}, 24576")), 4, 0, X - 10))
        streams.append(d)
    streams.append(vs)
    if cfg.no_lds:
        for st in streams:
            st[:] = [it for it in st if it.fn.__name__ != 'f' or it.fn.__qualname__.split('.')[0] not in ('kread', 'vread')]
    schedule(a, bb, streams, cfg.budget)
    if kind == 'mix':
        if not cfg.no_sm:
            a(f"s_cbranch_vccnz L_stub_{label}")
            a(f"L_ret_{label}:")
        a(f"s_add_u32 s{sK0}, s{sK0}, 24576")

def xmax(a, r, op="v_max_f32"):
    t = vT[8]
    for sw in ("v_permlane32_swap_b32", "v_permlane16_swap_b32"):
        a(f"v_mov_b32 v{t}, v{r}")
        a("s_nop 1")
        a(f"{sw} v{r}, v{t}")
        a(f"{op} v{r}, v{r}, v{t}")

def prestep(a, cfg, stubs):
    for n in range(4):
        for ks in range(6):
            a.wait(lg=[('K', 0, ks)])
            C = "0" if ks == 0 else vr(SB_PRE[n], 4)
            a(f"{MF} {vr(SB_PRE[n],4)}, {vr(KF[0]+4*ks,4)}, {Qf(n,ks)}, {C}")
            if n == 0: kread(0, 1, ks)(a)
    a("s_nop 7")
    for qb in range(4):
        S = SB_PRE[qb]; m = vT[qb]
        a(f"v_max3_f32 v{m}, v{S}, v{S+1}, v{S+2}")
        a(f"v_max_f32 v{m}, v{m}, v{S+3}")
    for qb in range(4): xmax(a, vT[qb])
    for qb in range(4):
        for r in range(4):
            a(f"v_sub_f32 v{NM+4*qb+r}, 0, v{vT[qb]}")
            a(f"v_sub_f32 v{SB_PRE[qb]+r}, v{SB_PRE[qb]+r}, v{vT[qb]}")
    a("s_nop 1")
    bb = []; qk_end = {}; qk_start = {}
    for n in range(4, 16):
        kb, qb = n >> 2, n & 3; S = SB_PRE[n & 7]
        qk_start[n] = len(bb)
        for ks in range(6):
            C = vr(NM + 4*qb, 4) if ks == 0 else vr(S, 4)
            bb.append(BB(f"{MF} {vr(S,4)}, {vr(KF[kb&1]+4*ks,4)}, {Qf(qb,ks)}, {C}", need_lg=[('K', kb&1, ks)]))
        qk_end[n] = len(bb) - 1
    M = len(bb)
    sm = []
    for n in range(16):
        dead = qk_start[n+8] - 1 if n + 8 < 16 else 10**6
        sm += sm_items(cfg, n, SB_PRE[n & 7], 0, (qk_end[n], 8) if n >= 4 else None, dead, n < 4)
    ks_ = []
    for kb in (2, 3):
        e0 = 0 if kb == 2 else qk_end[7]
        for ks in range(6): ks_.append(Item(kread(0, kb, ks), 4, e0 + 2*ks, qk_start[4*kb] - 6))
    schedule(a, bb, [sm, ks_], 12, flush=True)
    check(a, "pre", 0, stubs)
    a.wait(vm=0, lg=0)
    a("s_barrier")
    for ks in range(6): kread(1, 0, ks)(a)
    for it in vreads(vV, 0, VF, 0, 0, 0): it.fn(a)
    a("s_cbranch_vccnz L_stub_pre")
    a("L_ret_pre:")
    a(f"s_add_u32 s{sK0}, s{sK0}, 24576")

def rare(a, cfg, pw):
    a(f"L_rare_{pw}:")
    a("s_waitcnt vmcnt(0) lgkmcnt(0)")
    a("s_nop 15")
    g = vT[9]; t = vT[10]
    a(f"v_lshrrev_b32 v{t}, 4, v{vLane16}")
    a(f"v_and_b32 v{g}, 15, v{t}")
    a(f"v_mul_u32_u24 v{g}, 384, v{g}")
    a(f"v_lshrrev_b32 v{t}, 4, v{t}")
    a(f"v_lshl_add_u32 v{g}, v{t}, 4, v{g}")
    def tile(kb):
        a(f"s_add_u32 s{sT0}, s{sK0}, {kb*6144}")
        a(f"s_sub_u32 s{sT0}, s{sT0}, 24576")
        for ks in range(6):
            a(f"buffer_load_dwordx4 {vr(KF[1]+4*ks,4)}, v{g}, s[{sK}:{sK+3}], s{sT0} offen offset:{ks*64}")
        a("s_waitcnt vmcnt(0)")
        for qb in range(4):
            for ks in range(6):
                C = vr(NM + 4*qb, 4) if ks == 0 else vr(SB[qb], 4)
                a(f"{MF} {vr(SB[qb],4)}, {vr(KF[1]+4*ks,4)}, {Qf(qb,ks)}, {C}")
        a("s_nop 7")
    for qb in range(4): a(f"v_mov_b32 v{vT[qb]}, 0")
    for kb in range(4):
        tile(kb)
        for qb in range(4):
            S = SB[qb]; m = vT[qb]
            a(f"v_max3_f32 v{m}, v{m}, v{S}, v{S+1}")
            a(f"v_max3_f32 v{m}, v{m}, v{S+2}, v{S+3}")
    for qb in range(4): xmax(a, vT[qb])
    for qb in range(4):
        for r in range(4): a(f"v_sub_f32 v{NM+4*qb+r}, v{NM+4*qb+r}, v{vT[qb]}")
        a(f"v_exp_f32 v{vT[4+qb]}, -v{vT[qb]}")
    a("s_nop 0")
    for qb in range(4): a(f"v_mul_f32 v{vL[qb]}, v{vL[qb]}, v{vT[4+qb]}")
    for dt in range(12):
        for qb in range(4):
            for r in range(4):
                x = 4*(dt*4+qb) + r
                a(f"v_accvgpr_read_b32 v{t}, a{x}")
                a(f"v_mul_f32 v{t}, v{t}, v{vT[4+qb]}")
                a(f"v_accvgpr_write_b32 a{x}, v{t}")
    for kb in range(4):
        tile(kb)
        for qb in range(4):
            for it in sm_items(cfg, kb*4 + qb, SB[qb], pw, None, 0, kb == 0): it.fn(a)
    a("s_nop 1")
    a(f"s_setpc_b64 s[{sRet}:{sRet+1}]")

def qproj(a, cfg):
    vW = [vT[0], vT[1], vT[2], vT[3]]; vH = [vT[4], vT[5], vT[6], vT[7]]
    sW0, sW1, sHo = sT0, sT1, sCnt
    slots = [LV[0], LV[1], 98304, 122880]
    def wslot(s): return (s + 2) & 3
    def hload(s, qb, k2):
        def f(a): a.vm(f"buffer_load_dwordx4 {vr(32*(s%8)+8*qb+4*k2,4,'a')}, v{vH[qb]}, s[{sH}:{sH+3}], s{sHo} offen offset:{k2*1024}", ('h', s))
        return f
    def setoffs(s):
        def f(a):
            a(f"s_mov_b32 s{sW0}, {s*786432}"); a(f"s_mov_b32 s{sW1}, {s*786432 + 393216}"); a(f"s_mov_b32 s{sHo}, {s*2048}")
        return f
    for x in range(4): a(f"v_add_u32 v{vW[x]}, 49152, v{vV[x]}")
    for qb in range(4): a(f"v_add_u32 v{vH[qb]}, {qb*20480}, v{vLane16}")
    for s in range(3):
        setoffs(s)(a)
        for j in range(6): dma(a, vOffW, sW, [sW0, sW1][j//3], slots[wslot(s)] + (j//3)*12288, j % 3, ('W', s))
        for qb in range(4):
            for k2 in range(2): hload(s, qb, k2)(a)
    a.wait(vm=[('W', 0)]); a("s_barrier")
    if cfg.qstamps: qstamp(a, 0)
    def rd(s):
        sl = wslot(s)
        return (vV if sl < 2 else vW), (sl & 1) * 24576
    for it in vreads(*rd(0), WF, 0, 0, 0): it.fn(a)
    for s in range(10):
        bb = []; st = {}
        for c in range(48):
            dt, qb = c >> 2, c & 3; st[c] = len(bb)
            for k2 in range(2):
                D = vr(QAcc(dt, qb), 4)
                C = "0" if (s == 0 and k2 == 0) else D
                bb.append(BB(f"{MF} {D}, {vr(WF[dt&1]+4*k2,4)}, {vr(32*(s%8)+8*qb+4*k2,4,'a')}, {C}", need_lg=[('V', dt&1, 0), ('V', dt&1, 1)], need_vm=[('h', s)]))
        vs = []
        for dt in range(1, 12):
            early = 0 if dt == 1 else st[4*(dt-2)+3] + 1
            vs += vreads(*rd(s), WF, dt, early, st[4*dt] - 3)
        X = st[43] + 1
        def xbar(a, s=s):
            a.wait(vm=[('W', s+1)] if s < 9 else ['dK0'], lg=0); a("s_barrier")
        vs.append(Item(xbar, 8, X, X))
        if s < 9: vs += vreads(*rd(s+1), WF, 0, X, X + 4)
        d = []
        if s + 3 <= 9:
            d.append(Item(setoffs(s+3), 12, 0, 80))
            d += dma_items(vOffW, sW, [sW0, sW1], slots[wslot(s+3)], ('W', s+3), 1, 5, 80)
            for qb in range(4):
                for k2 in range(2): d.append(Item(hload(s+3, qb, k2), 8, 32 + 5*(2*qb+k2), 84))
        elif s == 7: d += dma_items(vOffK, sK, [sK0, sK1], LK[0], 'dK0', 1, 8, 80)
        elif s == 8:
            d += [Item(lambda a: a(f"s_add_u32 s{sK0}, s{sK0}, 24576\ns_add_u32 s{sK1}, s{sK1}, 24576"), 8, 0, 80)]
            d += dma_items(vOffK, sK, [sK0, sK1], LK[1], 'dK', 1, 8, 80)
        else:
            d += dma_items(vOffV, sV, [sV0, sV1], LV[0], 'dV', 1, 8, 80)
            d += [Item(lambda a: a(f"s_add_u32 s{sK1}, s{sK1}, 24576\ns_add_u32 s{sV0}, s{sV0}, 24576\ns_add_u32 s{sV1}, s{sV1}, 24576"), 12, 0, 90)]
        schedule(a, bb, [vs, d], cfg.budget)
        if cfg.qstamps: qstamp(a, s + 1)
    a("s_nop 7")
    for ks in (2, 3, 0, 1, 4, 5):
        for qb in range(4):
            X, Y = QAcc(2*ks, qb), QAcc(2*ks+1, qb)
            for b in (X, X+2, Y, Y+2): a(f"v_pk_mul_f32 {vr(b,2)}, {vr(b,2)}, s[{sScale}:{sScale+1}]")
            a(f"v_cvt_pk_bf16_f32 v{X}, v{X}, v{X+1}")
            a(f"v_cvt_pk_bf16_f32 v{X+1}, v{X+2}, v{X+3}")
            a(f"v_cvt_pk_bf16_f32 v{X+2}, v{Y}, v{Y+1}")
            a(f"v_cvt_pk_bf16_f32 v{X+3}, v{Y+2}, v{Y+3}")
        for sw in ("v_permlane32_swap_b32", "v_permlane16_swap_b32"):
            a("s_nop 1")
            for qb in range(4):
                X = QAcc(2*ks, qb)
                a(f"{sw} v{X}, v{X+2}")
                a(f"{sw} v{X+1}, v{X+3}")
        if ks < 4:
            for qb in range(4):
                for r in range(4): a(f"v_accvgpr_write_b32 a{192+4*(qb*4+ks)+r}, v{QAcc(2*ks,qb)+r}")
        if ks == 3:
            for k in range(6): kread(0, 0, k)(a)
    for q in range(4): a(f"v_mov_b32 v{vL[q]}, 0")
    a("s_nop 1")

def epilogue(a, cfg):
    for qb in range(4): xmax(a, vL[qb], "v_add_f32")
    for qb in range(4): a(f"v_rcp_f32 v{vL[qb]}, v{vL[qb]}")
    a(f"v_add_u32 v{vT[0]}, 4096, v{vLane16}")
    a("s_nop 4")
    n = 0
    for ks in range(6):
        for qb in range(4):
            B = 64 + 8*(n % 8); n += 1
            for u in range(2):
                for r in range(4): a(f"v_accvgpr_read_b32 v{B+4*u+r}, a{4*((2*ks+u)*4+qb)+r}")
            for r in range(8): a(f"v_mul_f32 v{B+r}, v{B+r}, v{vL[qb]}")
            for r in range(4): a(f"v_cvt_pk_bf16_f32 v{B+r}, v{B+2*r}, v{B+2*r+1}")
            a.vm(f"buffer_store_dwordx4 {vr(B,4)}, v{vLane16 if ks < 4 else vT[0]}, s[{sO}:{sO+3}], s{sOo[qb]} offen offset:{(ks&3)*1024}", 'st')

def setup(a, cfg):
    a(f"""
    s_cmp_ge_u32 s2, 256
    s_cbranch_scc1 L_attn_end
    s_load_dwordx4 s[{sK}:{sK+3}], s[0:1], {A_K}
    s_load_dwordx2 s[{sW}:{sW+1}], s[0:1], {A_WQ}
    s_load_dwordx2 s[4:5], s[0:1], {A_WS}
    v_lshrrev_b32 v1, 6, v0
    v_and_b32 v0, 63, v0
    v_readfirstlane_b32 s{sWave}, v1
    s_and_b32 s{sHead}, s2, 7
    s_lshl_b32 s{sHead}, s{sHead}, 2
    s_lshr_b32 s3, s2, 3
    s_and_b32 s3, s3, 3
    s_add_u32 s{sHead}, s{sHead}, s3
    s_lshr_b32 s{sQb}, s2, 5
    s_mul_i32 s{sLds}, s{sWave}, 3072
    s_mov_b32 s{sThr}, {f2u(THR):#x}
    s_mov_b32 s{sScale}, {f2u(192**-0.5*math.log2(math.e)):#x}
    s_mov_b32 s{sScale+1}, s{sScale}
    s_mov_b32 s{sK0}, 0
    s_mov_b32 s{sK1}, 12288
    s_mov_b32 s{sV0}, 0
    s_mov_b32 s{sV1}, 12288
    v_lshlrev_b32 v{vLane16}, 4, v0
    ; --- LDS read addresses
    v_lshrrev_b32 v20, 4, v0              ; g
    v_and_b32 v21, 15, v0
    v_lshrrev_b32 v22, 1, v21             ; (l&15)>>1
    v_xor_b32 v22, v22, v20
    v_lshlrev_b32 v22, 4, v22
    v_and_b32 v23, 7, v0
    v_lshl_add_u32 v22, v23, 7, v22
    v_bfe_u32 v23, v0, 3, 1
    v_mul_u32_u24 v23, 3072, v23
    v_add_u32 v{vK[0]}, v22, v23
    v_xor_b32 v{vK[1]}, 64, v{vK[0]}
    v_bfe_u32 v21, v0, 2, 2               ; rr
    v_and_b32 v22, 1, v20                 ; g&1
    v_lshl_add_u32 v23, v22, 2, v21       ; row&7
    v_lshrrev_b32 v24, 1, v23
    v_lshlrev_b32 v24, 1, v24
    v_bfe_u32 v25, v0, 1, 1               ; c>>1
    v_xor_b32 v24, v24, v25
    v_lshlrev_b32 v24, 4, v24
    v_lshl_add_u32 v24, v23, 7, v24
    v_and_b32 v25, 1, v0
    v_lshl_add_u32 v24, v25, 3, v24
    v_lshrrev_b32 v25, 1, v20
    v_mul_u32_u24 v25, 3072, v25
    v_add_u32 v24, v24, v25
    v_add_u32 v{vV[0]}, {LV[0]}, v24
    v_xor_b32 v{vV[1]}, 32, v{vV[0]}
    v_xor_b32 v{vV[2]}, 64, v{vV[0]}
    v_xor_b32 v{vV[3]}, 96, v{vV[0]}
    v_lshrrev_b32 v21, 3, v0              ; row&7
    v_and_b32 v22, 7, v0                  ; pos
    v_lshlrev_b32 v23, 1, v20
    v_xor_b32 v23, v23, v22
    v_lshlrev_b32 v23, 4, v23             ; V/W chunk*16
    s_and_b32 s3, s{sWave}, 1
    s_lshl_b32 s3, s3, 2
    v_add_u32 v24, s3, v20
    v_xor_b32 v24, v24, v22
    v_lshlrev_b32 v24, 4, v24             ; K chunk*16
    s_lshl_b32 s3, s{sWave}, 3
    v_add_u32 v21, s3, v21
    v_mul_u32_u24 v25, 384, v21
    v_add_u32 v{vOffK}, v25, v24
    v_add_u32 v{vOffV}, v25, v23
    v_mul_u32_u24 v25, 12288, v21
    v_add_u32 v{vOffW}, v25, v23
    s_waitcnt lgkmcnt(0)
    s_mul_i32 s3, s{sHead}, 786432
    s_add_u32 s{sV}, s{sK+2}, s3
    s_addc_u32 s{sV+1}, s{sK+3}, 0
    s_add_u32 s{sK}, s{sK}, s3
    s_addc_u32 s{sK+1}, s{sK+1}, 0
    s_mov_b32 s{sK+2}, 786432
    s_mov_b32 s{sK+3}, 0x20000
    s_mov_b32 s{sV+2}, 786432
    s_mov_b32 s{sV+3}, 0x20000
    s_mul_i32 s3, s{sHead}, 384
    s_add_u32 s{sW}, s{sW}, s3
    s_addc_u32 s{sW+1}, s{sW+1}, 0
    s_sub_u32 s{sW+2}, {640*12288}, s3
    s_mov_b32 s{sW+3}, 0x20000
    s_lshl_b32 s3, s{sQb}, 2
    s_add_u32 s3, s3, s{sWave}
    s_lshl_b32 s3, s3, 2
    s_mul_i32 s6, s3, 20480
    s_add_u32 s6, s6, {WS_H}
    s_add_u32 s{sH}, s4, s6
    s_addc_u32 s{sH+1}, s5, 0
    s_mov_b32 s{sH+2}, {4*20480}
    s_mov_b32 s{sH+3}, 0x20000
    s_add_u32 s{sO}, s4, {WS_O}
    s_addc_u32 s{sO+1}, s5, 0
    s_mov_b32 s{sO+2}, {128*192*1024}
    s_mov_b32 s{sO+3}, 0x20000
    s_mul_i32 s6, s3, {192*1024}
    s_mul_i32 s7, s{sHead}, 6144
    s_add_u32 s{sOo[0]}, s6, s7
    s_add_u32 s{sOo[1]}, s{sOo[0]}, {192*1024}
    s_add_u32 s{sOo[2]}, s{sOo[1]}, {192*1024}
    s_add_u32 s{sOo[3]}, s{sOo[2]}, {192*1024}
    """)

def gen_attn(cfg, name="attn_kernel"):
    a = Asm()
    a(kernel_head(name))
    setup(a, cfg)
    stubs = []
    stamp(a, cfg, 0)
    qproj(a, cfg)
    if cfg.sum == 'dot2': a(f"s_mov_b32 s{sT1}, 0x3f803f80")
    stamp(a, cfg, 1)
    prestep(a, cfg, stubs)
    stamp(a, cfg, 2)
    step(a, cfg, 'mix', 0, "s0", stubs, first=True)
    a(f"s_mov_b32 s{sCnt}, 14")
    st0 = (list(a.vmq), list(a.lgq))
    a(".p2align 3")
    a("L_attn_loop:")
    l0 = len(a.lines)
    step(a, cfg, 'mix', 1, "l1", stubs)
    step(a, cfg, 'mix', 0, "l0", stubs)
    assert st0 == (a.vmq, a.lgq), (st0, a.vmq, a.lgq)
    l1 = len(a.lines)
    a(f"s_sub_u32 s{sCnt}, s{sCnt}, 1")
    a(f"s_cmp_lg_u32 s{sCnt}, 0")
    a("s_cbranch_scc1 L_attn_loop")
    loop_lines = a.lines[l0:]
    step(a, cfg, 'mix', 1, "s29", stubs)
    step(a, cfg, 'mix', 0, "s30", stubs, dmaK=False)
    stamp(a, cfg, 3)
    step(a, cfg, 'fin', 1, "fin", stubs)
    stamp(a, cfg, 4)
    epilogue(a, cfg)
    if cfg.stamps:
        a.wait(vm=0); stamp(a, cfg, 5)
        a(f"s_add_u32 s{sO}, s4, {WS_DBG}\ns_addc_u32 s{sO+1}, s5, 0\ns_mov_b32 s{sO+2}, 0x100000")
        a(f"s_lshl_b32 s3, s2, 2\ns_add_u32 s3, s3, s{sWave}\ns_lshl_b32 s3, s3, 7")
        a("v_mov_b32 v1, 0")
        for i in range(6):
            for r in range(4): a(f"v_mov_b32 v{64+r}, s{sTS+4*i+r}")
            a(f"buffer_store_dwordx4 v[64:67], v1, s[{sO}:{sO+3}], s3 offen offset:{16*i}")
            a("s_nop 1")
        if cfg.qstamps:
            a(f"s_add_u32 s3, s3, 0x40000")
            for i in range(3):
                for r in range(4): a(f"v_mov_b32 v{64+r}, s{72+4*i+r}")
                a(f"buffer_store_dwordx4 v[64:67], v1, s[{sO}:{sO+3}], s3 offen offset:{16*i}")
                a("s_nop 1")
    a("L_attn_end:")
    a("s_endpgm")
    main_lines = list(a.lines)
    for label, pw in stubs:
        a(f"L_stub_{label}:\ns_call_b64 s[{sRet}:{sRet+1}], L_rare_{pw}\ns_branch L_ret_{label}")
    r0 = len(a.lines)
    for pw in (0, 1): rare(a, cfg, pw)
    errs = check_hazards(main_lines, name) + check_hazards(loop_lines + loop_lines, name + " loop") + check_hazards(a.lines[r0:], name + " rare")
    for e in errs: print(e)
    assert not errs
    return a.text(), kernel_desc(name, 512, accum=256, extra="  .amdhsa_float_denorm_mode_32 3\n"), loop_lines

if __name__ == "__main__":
    import sys
    txt, desc, loop = gen_attn(Cfg(stamps=True))
    out = f"; @launch kernel=attn_kernel grid=(256,1,1) block=(256,1,1) lds={LDS_BYTES}\n" + '.amdgcn_target "amdgcn-amd-amdhsa--gfx950"\n' + txt + desc
    open("attn_test.s", "w").write(out)
    open("loop.txt", "w").write("\n".join(loop))
```

```python
import math, struct
from asmlib import *
from sched import *
from layout import *
def f2u(x): return struct.unpack("<I", struct.pack("<f", x))[0]
MF = "v_mfma_f32_16x16x32_bf16"
GELU_B = -2.0*math.log2(math.e)*math.sqrt(2.0/math.pi)
GELU_A = GELU_B*0.044715

def srd(a, s, base, off, size):
    a(f"s_add_u32 s{s}, s{base}, {off}")
    a(f"s_addc_u32 s{s+1}, s{base+1}, 0")
    a(f"s_mov_b32 s{s+2}, {size}")
    a(f"s_mov_b32 s{s+3}, 0x20000")

def gelu(a, regs, t, sA, sB):
    for r, u in zip(regs, t): a(f"v_mul_f32 v{u}, v{r}, v{r}")
    for r, u in zip(regs, t): a(f"v_fma_f32 v{u}, v{u}, s{sA}, v{sB}")
    for r, u in zip(regs, t): a(f"v_mul_f32 v{u}, v{u}, v{r}")
    for r, u in zip(regs, t): a(f"v_exp_f32 v{u}, v{u}")
    a("s_nop 0")
    for r, u in zip(regs, t): a(f"v_add_f32 v{u}, 1.0, v{u}")
    for r, u in zip(regs, t): a(f"v_rcp_f32 v{u}, v{u}")
    a("s_nop 0")
    for r, u in zip(regs, t): a(f"v_mul_f32 v{r}, v{r}, v{u}")

def xred(a, r, t, op="v_add_f32"):
    for sw in ("v_permlane32_swap_b32", "v_permlane16_swap_b32"):
        a(f"v_mov_b32 v{t}, v{r}")
        a("s_nop 1")
        a(f"{sw} v{r}, v{t}")
        a(f"{op} v{r}, v{r}, v{t}")

class G:
    sW, sA, sE0, sE1, sE2, sE3 = 8, 12, 16, 20, 24, 28
    sWave, sLds, sWoff, sAoff, sMt, sNt, sX, sRb = 32, 33, 34, 35, 36, 37, 38, 39
    sJ = 40
    sC = 50
    sTS = 60
    vLane16 = 1; vOff = 2
    vRd = 8
    vA = 14
    vT = 18
    vE = 32
    WF = 64
    def __init__(self, name, RB, NT, KS, KT, NSLOT, PD, warg, wrow, a_ws, a_ksn, grid, NWB=4, stamps=False, gap=None, dbg_off=0):
        self.__dict__.update(locals()); del self.self
        self.nch = 2*NT; self.rowb = self.nch*16
        self.slotb = 32*KT*self.rowb
        self.NP = KT*NT//4; assert KT*NT % 4 == 0
        self.NC = KS//KT
        self.swz = (NT % 2 == 0)
        self.lds = min(NSLOT, self.NC)*self.slotb
        self.NB = min(self.NC, 256//(RB*KT*4))
        self.ACC = self.WF + 4*NWB; assert self.ACC + 4*RB*NT <= 256
        self.a = Asm()
    def acc(self, rb, T): return self.ACC + 4*(rb*self.NT + T)
    def afrag(self, c, rb, kk): return vr(4*((c % self.NB)*self.RB*self.KT + rb*self.KT + kk), 4, 'a')
    def stamp(self, i):
        if self.stamps:
            a = self.a
            a(f"s_memtime s[{self.sTS+4*i}:{self.sTS+4*i+1}]\ns_memrealtime s[{self.sTS+4*i+2}:{self.sTS+4*i+3}]")
            a.lgq.append('stamp'); a.wait(lg=0)
    def begin(self):
        a = self.a
        a(kernel_head(self.name))
        a(f"""
        s_cmp_ge_u32 s2, {self.grid}
        s_cbranch_scc1 L_{self.name}_end
        s_load_dwordx2 s[4:5], s[0:1], {A_WS}
        s_load_dwordx2 s[6:7], s[0:1], {self.warg}
        v_lshrrev_b32 v2, 6, v0
        v_and_b32 v0, 63, v0
        v_readfirstlane_b32 s{self.sWave}, v2
        v_lshlrev_b32 v{self.vLane16}, 4, v0
        s_and_b32 s{self.sX}, s2, 7
        s_lshr_b32 s3, s2, 3""")
    def addrs(self):
        a = self.a; t = self.vT
        M = (65536 + self.nch - 1)//self.nch
        for u in range(64*self.NP): assert (u*M) >> 16 == u//self.nch
        a(f"s_mul_i32 s{self.sLds}, s{self.sWave}, {8*self.KT*self.rowb}")
        a(f"s_mul_i32 s{self.sC}, s{self.sWave}, {8*self.KT}")
        a(f"s_mov_b32 s{self.sC+1}, {self.wrow}")
        for p in range(self.NP):
            a(f"v_add_u32 v{t}, {64*p}, v0")
            a(f"v_mul_u32_u24 v{t+1}, {M}, v{t}")
            a(f"v_lshrrev_b32 v{t+1}, 16, v{t+1}")
            a(f"v_mul_u32_u24 v{t+2}, {self.nch}, v{t+1}")
            a(f"v_sub_u32 v{t}, v{t}, v{t+2}")
            if self.swz:
                a(f"v_bfe_u32 v{t+2}, v{t+1}, 2, 1")
                a(f"v_lshlrev_b32 v{t+2}, 1, v{t+2}")
                a(f"v_xor_b32 v{t}, v{t}, v{t+2}")
            a(f"v_add_u32 v{t+1}, s{self.sC}, v{t+1}")
            a(f"v_mul_lo_u32 v{t+1}, v{t+1}, s{self.sC+1}")
            a(f"v_lshl_add_u32 v{self.vOff+p}, v{t}, 4, v{t+1}")
        a(f"v_lshrrev_b32 v{t}, 2, v0")
        a(f"v_mul_u32_u24 v{t}, {self.rowb}, v{t}")
        a(f"v_and_b32 v{t+1}, 3, v0")
        a(f"v_lshl_add_u32 v{t}, v{t+1}, 3, v{t}")
        R = self.vRd
        if self.swz:
            a(f"v_bfe_u32 v{t+1}, v0, 4, 1")
            a(f"v_lshlrev_b32 v{t+1}, 5, v{t+1}")
            a(f"v_add_u32 v{R}, v{t}, v{t+1}")
            a(f"v_sub_u32 v{R+1}, v{t}, v{t+1}")
        else:
            a(f"v_mov_b32 v{R}, v{t}"); a(f"v_mov_b32 v{R+1}, v{t}")
        for w in range(1, (self.lds + 65535)//65536):
            a(f"v_add_u32 v{R+2*w}, {65536*w}, v{R}"); a(f"v_add_u32 v{R+2*w+1}, {65536*w}, v{R+1}")
        for rb in range(self.RB): a(f"v_add_u32 v{self.vA+rb}, {rb*self.a_ksn*1024}, v{self.vLane16}")
    def load_items(self, c, early, gap):
        out = []; slot = (c % self.NSLOT)*self.slotb
        def offs(a):
            a(f"s_mov_b32 s{self.sWoff}, {c*32*self.KT*self.wrow}"); a(f"s_mov_b32 s{self.sAoff}, {c*self.KT*1024}")
        out.append(Item(offs, 8, early, early))
        ops = []
        for p in range(self.NP):
            def f1(a, p=p): a(f"s_add_u32 m0, s{self.sLds}, {slot + p*1024}")
            def f2(a, p=p):
                if a.lines[-1].strip().startswith("s_add_u32 m0"): a("s_nop 0")
                a.vm(f"buffer_load_dwordx4 v{self.vOff+p}, s[{self.sW}:{self.sW+3}], s{self.sWoff} offen lds", ('W', c))
            ops.append((f1, f2))
        for kk in range(self.KT):
            for rb in range(self.RB):
                def f(a, rb=rb, kk=kk):
                    a.vm(f"buffer_load_dwordx4 {self.afrag(c, rb, kk)}, v{self.vA+rb}, s[{self.sA}:{self.sA+3}], s{self.sAoff} offen offset:{kk*1024}", ('A', c, kk))
                ops.append((None, f))
        for j, (f1, f2) in enumerate(ops):
            g = early + 1 + int(j*gap)
            if f1: out.append(Item(f1, 4, g - 1, g))
            out.append(Item(f2, 8, g, g + 1))
        return out
    def mainloop(self, pre_items=None):
        a = self.a; RB, NT, KT, NWB = self.RB, self.NT, self.KT, self.NWB
        assert self.PD <= self.NSLOT - 2 or self.NSLOT >= self.NC
        assert self.PD < self.NB or self.NB >= self.NC
        for c in range(min(self.PD, self.NC)):
            for it in self.load_items(c, 0, 0): it.fn(a)
            if c == 0 and pre_items:
                for f in pre_items: f(a)
        NF = KT*NT
        seq = []
        for c in range(self.NC):
            for k2 in range(0, KT, 2):
                for T in range(NT): seq += [(c, k2, T), (c, k2+1, T)]
        def rd(i, h):
            c, kk, T = seq[i]
            off = (c % self.NSLOT)*self.slotb + (32*kk + 16*h)*self.rowb + T*32
            def fn(a): a.ds(f"ds_read_b64_tr_b16 {vr(self.WF+4*(i%NWB)+2*h,2)}, v{self.vRd+2*(off>>16)+(T&1)} offset:{off&0xffff}", ('F', i))
            return fn
        def xbar(c):
            def fn(a): a.wait(vm=[('W', c)]); a("s_barrier")
            return fn
        xbar(0)(a)
        self.stamp(1)
        for i in range(NWB):
            if i and i % NF == 0: xbar(i//NF)(a)
            for h in range(2): rd(i, h)(a)
        bb = []; first = {}; last = {}; cstart = {}
        for i in range(0, len(seq), 2):
            c, k2, T = seq[i]
            if i % NF == 0: cstart[c] = len(bb)
            first[i] = len(bb)
            for rb in range(RB):
                for d in range(2):
                    D = vr(self.acc(rb, T), 4)
                    C = "0" if (c == 0 and k2 + d == 0) else D
                    bb.append(BB(f"{MF} {D}, {vr(self.WF+4*((i+d)%NWB),4)}, {self.afrag(c, rb, k2+d)}, {C}",
                                 need_lg=[('F', i), ('F', i+1)], need_vm=[('A', c, k2), ('A', c, k2+1)]))
            last[i] = len(bb) - 1
        cstart[self.NC] = len(bb)
        rs = []
        for i in range(NWB, len(seq), 2):
            e = last[i - NWB]
            dl = max(e, min(first[i] - 1, e + 2*RB + 2))
            if i % NF == 0: rs.append(Item(xbar(i//NF), 8, e, e))
            for d in range(2):
                for h in range(2): rs.append(Item(rd(i + d, h), 4, e, dl))
        ld = []
        for c in range(self.NC - self.PD):
            nops = self.NP + KT*RB
            M = cstart[c+1] - cstart[c]
            gap = self.gap if self.gap else max(1.0, (M - 3)/nops)
            ld += self.load_items(c + self.PD, cstart[c], gap)
        schedule(a, bb, [rs, ld], 8)
        a("s_nop 7")
    def end(self):
        a = self.a
        if self.stamps:
            a.wait(vm=0); self.stamp(3)
            srd(a, self.sE0, 4, WS_DBG + self.dbg_off, 0x100000)
            a(f"s_lshl_b32 s3, s2, 2\ns_add_u32 s3, s3, s{self.sWave}\ns_lshl_b32 s3, s3, 6\nv_mov_b32 v2, 0")
            for i in range(4):
                for r in range(4): a(f"v_mov_b32 v{20+r}, s{self.sTS+4*i+r}")
                a(f"buffer_store_dwordx4 v[20:23], v2, s[{self.sE0}:{self.sE0+3}], s3 offen offset:{16*i}\ns_nop 1")
        a(f"L_{self.name}_end:\ns_endpgm")
        errs = check_hazards(a.lines, self.name)
        for e in errs: print(e)
        assert not errs
        nacc = self.NB*self.RB*self.KT*4
        return dict(name=self.name, text=a.text(), desc=kernel_desc(self.name, 256 + nacc, accum=256, extra="  .amdhsa_float_denorm_mode_32 3\n"),
                    launch=f"; @launch kernel={self.name} grid=({self.grid},1,1) block=(256,1,1) lds={self.lds}")
    def tile_offsets(self, stride_rb):
        a = self.a
        a(f"s_mul_i32 s{self.sC}, s{self.sRb}, 20480")
        a(f"s_mul_i32 s{self.sC+1}, s{self.sNt}, 5")
        for j in range(5):
            a(f"s_add_u32 s{self.sC+2}, s{self.sC+1}, {j}")
            a(f"s_lshr_b32 s{self.sC+3}, s{self.sC+2}, 1")
            a(f"s_lshl_b32 s{self.sC+3}, s{self.sC+3}, 10")
            a(f"s_and_b32 s{self.sC+2}, s{self.sC+2}, 1")
            a(f"s_lshl_b32 s{self.sC+2}, s{self.sC+2}, 3")
            a(f"s_add_u32 s{self.sJ+j}, s{self.sC+2}, s{self.sC+3}")
            if stride_rb: a(f"s_add_u32 s{self.sJ+j}, s{self.sJ+j}, s{self.sC}")

def unpack(a, dst, src):
    a(f"v_lshlrev_b32 v{dst}, 16, v{src}")
    a(f"v_and_b32 v{dst+1}, 0xffff0000, v{src}")

def common_64x80(g, wbytes):
    a = g.a
    a(f"s_and_b32 s{g.sNt}, s3, 7\ns_lshr_b32 s3, s3, 3\ns_lshl_b32 s{g.sMt}, s{g.sX}, 2\ns_add_u32 s{g.sMt}, s{g.sMt}, s3")
    a(f"s_lshl_b32 s{g.sRb}, s{g.sMt}, 2\ns_add_u32 s{g.sRb}, s{g.sRb}, s{g.sWave}")
    g.addrs()
    a("s_waitcnt lgkmcnt(0)")
    a(f"s_mul_i32 s3, s{g.sNt}, 160")
    srd(a, g.sW, 6, "s3", 0); a(f"s_sub_u32 s{g.sW+2}, {wbytes}, s3")
    a(f"s_mul_i32 s3, s{g.sRb}, {g.a_ksn*1024}\ns_add_u32 s3, s3, {g.a_ws}")
    srd(a, g.sA, 4, "s3", g.a_ksn*1024)

def k_oproj(stamps=False, **kw):
    p = dict(RB=4, NT=10, KS=24, KT=2, NSLOT=6, PD=3, NWB=6); p.update(kw)
    g = G("oproj_kernel", warg=A_WO, wrow=1280, a_ws=WS_O, a_ksn=192, grid=256, stamps=stamps, dbg_off=0x10000, **p)
    a = g.a; g.begin()
    a(f"s_and_b32 s{g.sNt}, s3, 3\ns_lshr_b32 s{g.sMt}, s3, 2")
    a(f"s_lshl_b32 s{g.sRb}, s{g.sMt}, 2\ns_add_u32 s{g.sRb}, s{g.sRb}, s{g.sWave}\ns_lshl_b32 s{g.sRb}, s{g.sRb}, 2")
    g.addrs()
    a("s_waitcnt lgkmcnt(0)")
    g.stamp(0)
    a(f"s_mul_i32 s3, s{g.sX}, {768*1280}\ns_mul_i32 s{g.sC}, s{g.sNt}, 320\ns_add_u32 s3, s3, s{g.sC}")
    srd(a, g.sW, 6, "s3", 0); a(f"s_sub_u32 s{g.sW+2}, {6144*1280}, s3")
    a(f"s_mul_i32 s3, s{g.sRb}, {192*1024}\ns_mul_i32 s{g.sC}, s{g.sX}, {24*1024}\ns_add_u32 s3, s3, s{g.sC}\ns_add_u32 s3, s3, {WS_O}")
    srd(a, g.sA, 4, "s3", 3*192*1024 + 24*1024)
    a(f"s_mul_i32 s3, s{g.sX}, {FRAG_BYTES}\ns_add_u32 s3, s3, {WS_PART}")
    srd(a, g.sE0, 4, "s3", FRAG_BYTES)
    a(f"s_mul_i32 s{g.sJ}, s{g.sRb}, 20480\ns_mul_i32 s3, s{g.sNt}, 5120\ns_add_u32 s{g.sJ}, s{g.sJ}, s3")
    for rb in range(1, 4): a(f"s_add_u32 s{g.sJ+rb}, s{g.sJ}, {rb*20480}")
    a(f"v_add_u32 v{g.vT+12}, 4096, v{g.vLane16}")
    g.mainloop()
    g.stamp(2)
    for rb in range(4):
        for j in range(5):
            X, Y = g.acc(rb, 2*j), g.acc(rb, 2*j+1)
            a(f"v_cvt_pk_bf16_f32 v{X}, v{X}, v{X+1}\nv_cvt_pk_bf16_f32 v{X+1}, v{X+2}, v{X+3}")
            a(f"v_cvt_pk_bf16_f32 v{X+2}, v{Y}, v{Y+1}\nv_cvt_pk_bf16_f32 v{X+3}, v{Y+2}, v{Y+3}")
            a.vm(f"buffer_store_dwordx4 {vr(X,4)}, v{g.vLane16 if j < 4 else g.vT+12}, s[{g.sE0}:{g.sE0+3}], s{g.sJ+rb} offen offset:{(j&3)*1024}", 'st')
    return g.end()

def k_gemm1(stamps=False, **kw):
    p = dict(RB=1, NT=5, KS=20, KT=4, NSLOT=5, PD=3, NWB=16); p.update(kw)
    g = G("gemm1_kernel", warg=A_W1, wrow=1280, a_ws=WS_T, a_ksn=20, grid=256, stamps=stamps, dbg_off=0x20000, **p)
    a = g.a; g.begin(); common_64x80(g, 640*1280)
    g.stamp(0)
    srd(a, g.sE0, 4, WS_Z, FRAG_BYTES)
    g.tile_offsets(False)
    t = g.vT; E = g.vE
    a(f"s_lshr_b32 s3, s{g.sNt}, 2\ns_add_u32 s3, s3, 1\ns_sub_u32 s{g.sC}, 0, s3\ns_bitcmp1_b32 s{g.sNt}, 1\ns_cselect_b32 s3, s{g.sC}, s3")
    a(f"s_lshl_b32 s{g.sC}, s{g.sRb}, 4\ns_add_u32 s3, s3, s{g.sC}")
    a(f"v_and_b32 v{t}, 15, v0\nv_add_u32 v{t}, s3, v{t}")
    a(f"s_movk_i32 s3, 0x7ff\nv_cmp_lt_u32 s[{g.sC+8}:{g.sC+9}], s3, v{t}")
    a(f"v_and_b32 v{t}, 0x7ff, v{t}\nv_lshrrev_b32 v{t+1}, 4, v{t}\nv_mul_u32_u24 v{t+1}, 20480, v{t+1}")
    a(f"v_and_b32 v{t}, 15, v{t}\nv_and_b32 v{t+2}, 48, v0\nv_or_b32 v{t}, v{t}, v{t+2}\nv_lshl_add_u32 v{E+31}, v{t}, 4, v{t+1}")
    a(f"s_mov_b32 s{g.sC+4}, {f2u(GELU_A):#x}\nv_mov_b32 v{E+30}, {f2u(GELU_B):#x}")
    g.mainloop()
    g.stamp(2)
    regs = [g.acc(0, 0) + i for i in range(20)]
    gelu(a, regs, [E + i for i in range(20)], g.sC+4, E+30)
    for j in range(5):
        X = g.acc(0, j)
        a(f"v_cvt_pk_bf16_f32 v{X}, v{X}, v{X+1}\nv_cvt_pk_bf16_f32 v{X+1}, v{X+2}, v{X+3}")
        a(f"v_cndmask_b32 v{X}, v{X}, 0, s[{g.sC+8}:{g.sC+9}]\nv_cndmask_b32 v{X+1}, v{X+1}, 0, s[{g.sC+8}:{g.sC+9}]")
        a.vm(f"buffer_store_dwordx2 {vr(X,2)}, v{E+31}, s[{g.sE0}:{g.sE0+3}], s{g.sJ+j} offen", 'st')
    return g.end()

def k_gemm2(stamps=False, **kw):
    p = dict(RB=1, NT=5, KS=20, KT=4, NSLOT=5, PD=3, NWB=16); p.update(kw)
    g = G("gemm2_kernel", warg=A_W2, wrow=1280, a_ws=WS_Z, a_ksn=20, grid=256, stamps=stamps, dbg_off=0x30000, **p)
    a = g.a; g.begin(); common_64x80(g, 640*1280)
    g.stamp(0)
    srd(a, g.sE0, 4, WS_X1, FRAG_BYTES); srd(a, g.sE1, 4, WS_HB, FRAG_BYTES); srd(a, g.sE2, 4, WS_ST, 2048*64)
    g.tile_offsets(True)
    t = g.vT; E = g.vE
    a(f"v_and_b32 v{t}, 15, v0\nv_lshlrev_b32 v{E+31}, 6, v{t}")
    a(f"s_lshl_b32 s{g.sC+4}, s{g.sRb}, 10\ns_lshl_b32 s3, s{g.sNt}, 3\ns_add_u32 s{g.sC+4}, s{g.sC+4}, s3")
    pre = [(lambda a, j=j: a.vm(f"buffer_load_dwordx2 {vr(E+2*j,2)}, v{g.vLane16}, s[{g.sE1}:{g.sE1+3}], s{g.sJ+j} offen", 'E')) for j in range(5)]
    g.mainloop(pre)
    g.stamp(2)
    a.wait(vm=['E'])
    A0 = g.acc(0, 0)
    for j in range(5):
        for h in range(2):
            unpack(a, t, E + 2*j + h)
            a(f"v_add_f32 v{A0+4*j+2*h}, v{A0+4*j+2*h}, v{t}\nv_add_f32 v{A0+4*j+2*h+1}, v{A0+4*j+2*h+1}, v{t+1}")
    for j in range(5):
        X = A0 + 4*j
        a(f"v_cvt_pk_bf16_f32 v{E+2*j}, v{X}, v{X+1}\nv_cvt_pk_bf16_f32 v{E+2*j+1}, v{X+2}, v{X+3}")
        a.vm(f"buffer_store_dwordx2 {vr(E+2*j,2)}, v{g.vLane16}, s[{g.sE0}:{g.sE0+3}], s{g.sJ+j} offen", 'st')
    S, Q = E + 12, E + 13
    a(f"v_add_f32 v{S}, v{A0}, v{A0+1}")
    for i in range(2, 20): a(f"v_add_f32 v{S}, v{S}, v{A0+i}")
    xred(a, S, t)
    a(f"v_mul_f32 v{t+2}, {f2u(1/80):#x}, v{S}")
    for i in range(20): a(f"v_sub_f32 v{A0+i}, v{A0+i}, v{t+2}")
    a(f"v_mul_f32 v{Q}, v{A0}, v{A0}")
    for i in range(1, 20): a(f"v_fmac_f32 v{Q}, v{A0+i}, v{A0+i}")
    xred(a, Q, t)
    a(f"v_cmp_gt_u32 vcc, 16, v0\ns_and_saveexec_b64 s[{g.sC+6}:{g.sC+7}], vcc")
    a.vm(f"buffer_store_dwordx2 {vr(S,2)}, v{E+31}, s[{g.sE2}:{g.sE2+3}], s{g.sC+4} offen", 'st')
    a(f"s_mov_b64 exec, s[{g.sC+6}:{g.sC+7}]")
    return g.end()

def k_gemm3(stamps=False, **kw):
    p = dict(RB=2, NT=6, KS=20, KT=2, NSLOT=10, PD=5, NWB=8); p.update(kw)
    g = G("gemm3_kernel", warg=A_W3, wrow=3072, a_ws=WS_X1, a_ksn=20, grid=256, stamps=stamps, dbg_off=0x40000, **p)
    a = g.a; g.begin()
    a(f"s_and_b32 s{g.sNt}, s3, 15\ns_lshr_b32 s3, s3, 4\ns_lshl_b32 s{g.sMt}, s{g.sX}, 1\ns_add_u32 s{g.sMt}, s{g.sMt}, s3")
    a(f"s_lshl_b32 s{g.sRb}, s{g.sMt}, 2\ns_add_u32 s{g.sRb}, s{g.sRb}, s{g.sWave}\ns_lshl_b32 s{g.sRb}, s{g.sRb}, 1")
    g.addrs()
    a("s_waitcnt lgkmcnt(0)")
    g.stamp(0)
    a(f"s_mul_i32 s3, s{g.sNt}, 192")
    srd(a, g.sW, 6, "s3", 0); a(f"s_sub_u32 s{g.sW+2}, {640*3072}, s3")
    a(f"s_mul_i32 s3, s{g.sRb}, 20480\ns_add_u32 s3, s3, {WS_X1}")
    srd(a, g.sA, 4, "s3", 2*20480)
    srd(a, g.sE0, 4, WS_H3, 128*48*1024); srd(a, g.sE1, 4, WS_ST, 2048*64); srd(a, g.sE2, 4, WS_CS3, 1536*4)
    t = g.vT; E = g.vE
    CS = 176; ST = 200
    assert g.ACC + 48 <= CS
    a(f"v_and_b32 v{t}, 15, v0\nv_lshlrev_b32 v{t}, 6, v{t}\nv_and_b32 v{t+1}, 48, v0\nv_add_u32 v{t+10}, v{t}, v{t+1}")
    a(f"v_mov_b32 v{t+11}, v{t+1}")
    a(f"s_lshl_b32 s{g.sJ}, s{g.sRb}, 10\ns_add_u32 s{g.sJ+1}, s{g.sJ}, 1024\ns_mul_i32 s{g.sJ+2}, s{g.sNt}, 384")
    a(f"s_mul_i32 s{g.sJ+3}, s{g.sRb}, {48*1024}\ns_mul_i32 s3, s{g.sNt}, 3072\ns_add_u32 s{g.sJ+3}, s{g.sJ+3}, s3\ns_add_u32 s{g.sJ+4}, s{g.sJ+3}, {48*1024}")
    a(f"s_mov_b32 s{g.sC+4}, {f2u(GELU_A):#x}\nv_mov_b32 v{E+30}, {f2u(GELU_B):#x}")
    pre = [(lambda a, rb=rb: a.vm(f"buffer_load_dwordx4 {vr(ST+4*rb,4)}, v{t+10}, s[{g.sE1}:{g.sE1+3}], s{g.sJ+rb} offen", 'E')) for rb in range(2)]
    pre += [(lambda a, j=j: a.vm(f"buffer_load_dwordx4 {vr(CS+4*j,4)}, v{t+11}, s[{g.sE2}:{g.sE2+3}], s{g.sJ+2} offen offset:{64*j}", 'E')) for j in range(6)]
    g.mainloop(pre)
    g.stamp(2)
    a.wait(vm=['E'])
    for rb in range(2):
        s0, q0, s1, q1 = ST+4*rb, ST+4*rb+1, ST+4*rb+2, ST+4*rb+3
        mu, rs = t+2, t+3
        a(f"v_add_f32 v{mu}, v{s0}, v{s1}")
        xred(a, mu, t)
        a(f"v_mul_f32 v{mu}, {f2u(1/640):#x}, v{mu}")
        a(f"v_mov_b32 v{t+4}, {f2u(1/80):#x}")
        a(f"v_fma_f32 v{s0}, v{s0}, v{t+4}, -v{mu}\nv_fma_f32 v{s1}, v{s1}, v{t+4}, -v{mu}")
        a(f"v_mul_f32 v{s0}, v{s0}, v{s0}\nv_fmac_f32 v{s0}, v{s1}, v{s1}\nv_add_f32 v{q0}, v{q0}, v{q1}")
        a(f"v_mov_b32 v{t+4}, {f2u(80.0):#x}\nv_fma_f32 v{rs}, v{s0}, v{t+4}, v{q0}")
        xred(a, rs, t)
        a(f"v_mov_b32 v{t+4}, {f2u(1e-5):#x}\nv_fmac_f32 v{t+4}, {f2u(1/640):#x}, v{rs}\nv_rsq_f32 v{rs}, v{t+4}")
        A0 = g.acc(rb, 0)
        for i in range(24): a(f"v_fma_f32 v{A0+i}, -v{mu}, v{CS+i}, v{A0+i}")
        for i in range(24): a(f"v_mul_f32 v{A0+i}, v{A0+i}, v{rs}")
        gelu(a, [A0+i for i in range(24)], [E+i for i in range(24)], g.sC+4, E+30)
        for j in range(3):
            X, Y = g.acc(rb, 2*j), g.acc(rb, 2*j+1)
            a(f"v_cvt_pk_bf16_f32 v{X}, v{X}, v{X+1}\nv_cvt_pk_bf16_f32 v{X+1}, v{X+2}, v{X+3}")
            a(f"v_cvt_pk_bf16_f32 v{X+2}, v{Y}, v{Y+1}\nv_cvt_pk_bf16_f32 v{X+3}, v{Y+2}, v{Y+3}")
            a.vm(f"buffer_store_dwordx4 {vr(X,4)}, v{g.vLane16}, s[{g.sE0}:{g.sE0+3}], s{g.sJ+3+rb} offen offset:{j*1024}", 'st')
    return g.end()

def k_gemm4(stamps=False, **kw):
    p = dict(RB=1, NT=5, KS=48, KT=4, NSLOT=7, PD=4, NWB=16); p.update(kw)
    g = G("gemm4_kernel", warg=A_W4, wrow=1280, a_ws=WS_H3, a_ksn=48, grid=256, stamps=stamps, dbg_off=0x50000, **p)
    a = g.a; g.begin()
    a(f"s_load_dwordx2 s[{g.sC+8}:{g.sC+9}], s[0:1], {A_OUT}")
    common_64x80(g, 1536*1280)
    g.stamp(0)
    srd(a, g.sE0, g.sC+8, 0, 2048*1280); srd(a, g.sE1, 4, WS_X1, FRAG_BYTES); srd(a, g.sE2, 4, WS_X2, FRAG_BYTES); srd(a, g.sE3, 4, WS_MOD + 5*1280, 1280)
    g.tile_offsets(True)
    t = g.vT; E = g.vE
    a(f"s_mul_i32 s{g.sC+1}, s{g.sNt}, 5")
    for j in range(5):
        a(f"s_add_u32 s3, s{g.sC+1}, {j}\ns_lshr_b32 s{g.sC+2}, s3, 1\ns_lshl_b32 s{g.sC+2}, s{g.sC+2}, 6\ns_and_b32 s3, s3, 1\ns_lshl_b32 s3, s3, 3\ns_add_u32 s{g.sJ+5+j}, s3, s{g.sC+2}")
    a(f"v_and_b32 v{t+10}, 48, v0")
    a(f"v_and_b32 v{t}, 15, v0\nv_mul_u32_u24 v{t}, 1280, v{t}\nv_lshrrev_b32 v{t+1}, 1, v{t+10}\nv_add_u32 v{t+11}, v{t}, v{t+1}")
    a(f"s_mul_i32 s{g.sC+4}, s{g.sRb}, 20480\ns_mul_i32 s3, s{g.sNt}, 160\ns_add_u32 s{g.sC+4}, s{g.sC+4}, s3")
    pre = []
    for j in range(5):
        pre.append(lambda a, j=j: a.vm(f"buffer_load_dwordx2 {vr(E+2*j,2)}, v{g.vLane16}, s[{g.sE1}:{g.sE1+3}], s{g.sJ+j} offen", 'E'))
        pre.append(lambda a, j=j: a.vm(f"buffer_load_dwordx2 {vr(E+10+2*j,2)}, v{g.vLane16}, s[{g.sE2}:{g.sE2+3}], s{g.sJ+j} offen", 'E'))
        pre.append(lambda a, j=j: a.vm(f"buffer_load_dwordx2 {vr(E+20+2*j,2)}, v{t+10}, s[{g.sE3}:{g.sE3+3}], s{g.sJ+5+j} offen", 'E'))
    g.mainloop(pre)
    g.stamp(2)
    a.wait(vm=['E'])
    A0 = g.acc(0, 0)
    for j in range(5):
        for h in range(2):
            x = A0 + 4*j + 2*h
            unpack(a, t, E + 2*j + h)
            a(f"v_add_f32 v{x}, v{x}, v{t}\nv_add_f32 v{x+1}, v{x+1}, v{t+1}")
            unpack(a, t, E + 20 + 2*j + h)
            a(f"v_mul_f32 v{x}, v{x}, v{t}\nv_mul_f32 v{x+1}, v{x+1}, v{t+1}")
            a(f"v_cvt_pk_bf16_f32 v{x}, v{x}, v{x+1}")
            unpack(a, t, x); unpack(a, t+2, E + 10 + 2*j + h)
            a(f"v_add_f32 v{t}, v{t}, v{t+2}\nv_add_f32 v{t+1}, v{t+1}, v{t+3}")
            a(f"v_cvt_pk_bf16_f32 v{A0+4*j+h}, v{t}, v{t+1}")
        a.vm(f"buffer_store_dwordx2 {vr(A0+4*j,2)}, v{t+11}, s[{g.sE0}:{g.sE0+3}], s{g.sC+4} offen offset:{32*j}", 'st')
    return g.end()
```

```python
WS_MOD = 0
WS_CS3 = 0x0000_4000
WS_ST  = 0x0001_0000
WS_H   = 0x0010_0000
WS_X2  = 0x0040_0000
WS_HB  = 0x0070_0000
WS_T   = 0x00A0_0000
WS_Z   = 0x00D0_0000
WS_X1  = 0x0100_0000
WS_H3  = 0x0130_0000
WS_PART= 0x0200_0000
WS_O   = 0x0400_0000
WS_DBG = 0x0F00_0000
FRAG_BYTES = 128*20*1024
A_X, A_K, A_V, A_WQ, A_WO, A_BX, A_W1, A_W2, A_W3, A_W4, A_C, A_WMOD, A_OUT, A_DBG, A_WS = [8*i for i in range(15)]
```

```python
class Item:
    def __init__(self, fn, cost=4, early=0, dead=10**9, after=None, n=1):
        self.fn = fn
        self.cost = cost
        self.early = early
        self.dead = dead
        self.after = after
        self.n = n

class BB:
    def __init__(self, text, need_lg=None, need_vm=None, pre=None):
        self.text = text; self.need_lg = need_lg; self.need_vm = need_vm; self.pre = pre

def count_ins(a, start):
    n = 0
    for l in a.lines[start:]:
        s = l.split(';')[0].strip()
        if s and not s.startswith('.') and not s.endswith(':'):
            n += int(s.split()[1], 0) + 1 if s.startswith('s_nop') else 1
    return n

def schedule(a, bb, streams, budget=8, flush=True):
    pos = {}
    heads = [0] * len(streams)
    M = len(bb)
    def ready(it, m):
        if it.early > m: return False
        if it.after is not None:
            mi, d = it.after
            if mi not in pos: return False
            if count_ins(a, pos[mi]) < d: return False
        return True
    def effdead(si):
        st = streams[si]; best = 10**9; acc = 0
        for k in range(heads[si], min(len(st), heads[si] + 14)):
            best = min(best, st[k].dead - acc / budget)
            acc += st[k].cost
        return best
    for m, b in enumerate(bb):
        if b.pre: b.pre(a)
        a.wait(vm=b.need_vm, lg=b.need_lg)
        a(b.text); pos[m] = len(a.lines)
        left = budget
        if m + 1 < M:
            nb = bb[m + 1]
            if (nb.need_lg is not None and a._need(a.lgq, nb.need_lg) is not None) or (nb.need_vm is not None and a._need(a.vmq, nb.need_vm) is not None):
                left -= 4
        while True:
            cand = []
            for si, st in enumerate(streams):
                if heads[si] < len(st):
                    it = st[heads[si]]
                    if ready(it, m): cand.append((effdead(si), si, it))
                    elif it.dead <= m and it.early <= m: cand.append((-1, si, it))
            cand.sort(key=lambda x: (x[0], x[1]))
            pick = None
            for ed, si, it in cand:
                if it.dead <= m or ed <= m or it.cost <= left:
                    pick = (si, it); break
            if pick is None: break
            si, it = pick
            if it.after is not None:
                d = count_ins(a, pos[it.after[0]])
                if d < it.after[1]: a(f"s_nop {it.after[1] - d - 1}")
            it.fn(a); heads[si] += 1; left -= it.cost
    if flush:
        for si, st in enumerate(streams):
            while heads[si] < len(st):
                it = st[heads[si]]
                if it.after is not None:
                    d = count_ins(a, pos[it.after[0]])
                    if d < it.after[1]: a(f"s_nop {it.after[1] - d - 1}")
                it.fn(a); heads[si] += 1
```

```python
import math, struct
from asmlib import *
from layout import *
from gemm import srd, unpack, xred, f2u

def fin(a, name, vgpr, grid, block, lds):
    a(f"L_{name}_end:\ns_endpgm")
    errs = check_hazards(a.lines, name)
    for e in errs: print(e)
    assert not errs
    return dict(name=name, text=a.text(), desc=kernel_desc(name, vgpr, extra="  .amdhsa_float_denorm_mode_32 3\n"),
                launch=f"; @launch kernel={name} grid=({grid},1,1) block=({block},1,1) lds={lds}")

def k_mod():
    name = "mod_kernel"; a = Asm(); a(kernel_head(name))
    a(f"""
    s_cmp_ge_u32 s2, 176
    s_cbranch_scc1 L_{name}_end
    s_load_dwordx2 s[4:5], s[0:1], {A_WS}
    s_load_dwordx4 s[24:27], s[0:1], {A_C}
    s_load_dwordx2 s[28:29], s[0:1], {A_W3}
    s_and_b32 s3, s2, 127
    s_and_b32 s6, s3, 0x70
    s_and_b32 s7, s3, 7
    s_lshl_b32 s7, s7, 1
    s_or_b32 s6, s6, s7
    s_lshr_b32 s3, s3, 3
    s_and_b32 s3, s3, 1
    s_or_b32 s30, s6, s3
    s_cmp_ge_u32 s2, 128
    s_cselect_b32 s31, 1, 0
    s_movk_i32 s32, 3072
    s_cselect_b32 s32, s32, 7680
    s_cselect_b32 s33, 48, 120
    s_cmp_ge_u32 s30, s33
    s_cbranch_scc1 L_{name}_end
    v_lshrrev_b32 v1, 2, v0           ; row0
    v_and_b32 v2, 3, v0
    v_mul_lo_u32 v3, v1, s32
    v_lshl_add_u32 v3, v2, 4, v3
    v_lshlrev_b32 v4, 1, v1
    s_waitcnt lgkmcnt(0)
    s_cmp_eq_u32 s31, 1
    s_cselect_b32 s8, s28, s26
    s_cselect_b32 s9, s29, s27
    s_mul_i32 s10, s32, 640
    s_mov_b32 s11, 0x20000
    """)
    srd(a, 12, 24, 0, 1280)
    a("s_lshl_b32 s34, s30, 6\ns_lshl_b32 s35, s32, 6")
    for i in range(10):
        a.vm(f"buffer_load_ushort v{10+i}, v4, s[12:15], 0 offen offset:{128*i}", 'c')
    for i in range(10):
        a.vm(f"buffer_load_dwordx4 {vr(32+4*i,4)}, v3, s[8:11], s34 offen", ('w', i))
        if i < 9: a("s_add_u32 s34, s34, s35")
    a.wait(vm=['c'])
    a(f"s_mov_b32 s36, {f2u(-math.log2(math.e)):#x}")
    for i in range(10): a(f"v_lshlrev_b32 v{10+i}, 16, v{10+i}")
    for i in range(10): a(f"v_mul_f32 v{20+i}, s36, v{10+i}")
    for i in range(10): a(f"v_exp_f32 v{20+i}, v{20+i}")
    for i in range(10): a(f"v_add_f32 v{20+i}, 1.0, v{20+i}")
    for i in range(10): a(f"v_rcp_f32 v{20+i}, v{20+i}")
    for i in range(10): a(f"v_mul_f32 v{10+i}, v{10+i}, v{20+i}")
    for i in range(10): a(f"v_cvt_pk_bf16_f32 v{10+i}, v{10+i}, v{10+i}")
    a("s_cmp_eq_u32 s31, 1\ns_cselect_b64 s[38:39], -1, 0")
    for i in range(10): a(f"v_lshlrev_b32 v{10+i}, 16, v{10+i}")
    for i in range(10): a(f"v_cndmask_b32 v{10+i}, v{10+i}, 1.0, s[38:39]")
    for j in range(8): a(f"v_mov_b32 v{20+j}, 0")
    for i in range(10):
        a.wait(vm=[('w', i)])
        for q in range(4):
            unpack(a, 28, 32+4*i+q)
            a(f"v_fmac_f32 v{20+2*q}, v{10+i}, v28\nv_fmac_f32 v{21+2*q}, v{10+i}, v29")
    a("s_nop 1")
    for ror in (4, 8):
        for j in range(8): a(f"v_add_f32_dpp v{20+j}, v{20+j}, v{20+j} row_ror:{ror} row_mask:0xf bank_mask:0xf")
    for j in range(8): xred(a, 20+j, 28)
    a("v_lshrrev_b32 v5, 6, v0\nv_lshlrev_b32 v5, 7, v5\nv_lshl_add_u32 v5, v2, 5, v5")
    a("ds_write_b128 v5, v[20:23]\nds_write_b128 v5, v[24:27] offset:16")
    a("s_waitcnt lgkmcnt(0)\ns_barrier")
    a("v_and_b32 v6, 31, v0\nv_lshlrev_b32 v5, 2, v6")
    for w in range(4): a(f"ds_read_b32 v{20+w}, v5 offset:{128*w}")
    srd(a, 16, 4, WS_MOD, 7680); srd(a, 20, 4, WS_CS3, 6144)
    a("s_waitcnt lgkmcnt(0)")
    a("v_add_f32 v20, v20, v21\nv_add_f32 v22, v22, v23\nv_add_f32 v20, v20, v22")
    a("v_cmp_gt_u32 vcc, 32, v0\ns_and_saveexec_b64 s[40:41], vcc")
    a(f"s_cbranch_execz L_{name}_end")
    a(f"s_cmp_eq_u32 s31, 1\ns_cbranch_scc1 L_{name}_cs")
    a("v_cvt_pk_bf16_f32 v20, v20, v20\nv_lshlrev_b32 v21, 16, v20\nv_add_f32 v21, 1.0, v21\nv_cvt_pk_bf16_f32 v21, v21, v21")
    a("s_cmp_ge_u32 s30, 60\ns_cselect_b32 s3, 60, 0\ns_sub_u32 s3, s30, s3\ns_sub_u32 s3, s3, 20\ns_cmp_lt_u32 s3, 20\ns_cselect_b64 s[38:39], -1, 0")
    a("v_cndmask_b32 v20, v20, v21, s[38:39]")
    a("v_bfe_u32 v7, v6, 2, 2\nv_lshlrev_b32 v7, 4, v7\nv_lshrrev_b32 v8, 4, v6\nv_lshl_add_u32 v7, v8, 3, v7\nv_and_b32 v8, 3, v6\nv_lshl_add_u32 v7, v8, 1, v7")
    a("s_lshl_b32 s3, s30, 6")
    a("buffer_store_short v20, v7, s[16:19], s3 offen")
    a("s_endpgm")
    a(f"L_{name}_cs:")
    a("s_lshl_b32 s3, s30, 7")
    a("buffer_store_dword v20, v5, s[20:23], s3 offen")
    return fin(a, name, 72, 176, 256, 512)

vF, vX, vM, vW, vR = 1, 2, 3, 4, 5
T = 8
def row_setup(a, name):
    a(kernel_head(name))
    a(f"""
    s_cmp_ge_u32 s2, 256
    s_cbranch_scc1 L_{name}_end
    s_load_dwordx2 s[4:5], s[0:1], {A_WS}
    s_load_dwordx2 s[6:7], s[0:1], {A_X}
    v_lshrrev_b32 v8, 6, v0            ; wave
    v_and_b32 v9, 7, v0                ; row8
    v_bfe_u32 v10, v0, 3, 2            ; g
    v_bfe_u32 v11, v0, 5, 1            ; kk
    v_lshl_add_u32 v11, v8, 1, v11     ; ks
    s_and_b32 s3, s2, 1
    s_lshl_b32 s3, s3, 3
    v_add_u32 v12, s3, v9
    v_lshl_add_u32 v13, v10, 4, v12
    v_lshlrev_b32 v13, 4, v13
    v_lshl_add_u32 v{vF}, v11, 10, v13
    v_mul_u32_u24 v13, 1280, v12
    v_lshl_add_u32 v13, v11, 6, v13
    v_lshl_add_u32 v{vX}, v10, 3, v13
    v_lshlrev_b32 v13, 6, v11
    v_lshl_add_u32 v{vM}, v10, 4, v13
    v_mul_u32_u24 v{vR}, 48, v9
    v_lshl_add_u32 v{vW}, v8, 2, v{vR}
    s_lshr_b32 s3, s2, 1
    s_mul_i32 s28, s3, 20480
    s_waitcnt lgkmcnt(0)
    """)
    srd(a, 8, 6, 0, 2048*1280); srd(a, 12, 4, WS_MOD, 7680)

def rowsum(a, r, region):
    a("s_nop 1")
    a(f"v_add_f32_dpp v{r}, v{r}, v{r} row_ror:8 row_mask:0xf bank_mask:0xf")
    xred(a, r, T)
    a(f"ds_write_b32 v{vW}, v{r} offset:{region*384}")
    a("s_waitcnt lgkmcnt(0)\ns_barrier")
    a(f"ds_read_b128 {vr(T,4)}, v{vR} offset:{region*384}\nds_read_b128 {vr(T+4,4)}, v{vR} offset:{region*384+16}\nds_read_b64 {vr(T+8,2)}, v{vR} offset:{region*384+32}")
    a("s_waitcnt lgkmcnt(0)")
    for i in range(5): a(f"v_add_f32 v{T+2*i}, v{T+2*i}, v{T+2*i+1}")
    a(f"v_add_f32 v{T}, v{T}, v{T+2}\nv_add_f32 v{T+4}, v{T+4}, v{T+6}\nv_add_f32 v{T}, v{T}, v{T+8}\nv_add_f32 v{r}, v{T}, v{T+4}")

def rnd(a, X, P):
    for i in range(4): a(f"v_cvt_pk_bf16_f32 v{P+i}, v{X+2*i}, v{X+2*i+1}")
    for i in range(4): unpack(a, X+2*i, P+i)
def rnd1(a, r):
    a(f"v_cvt_pk_bf16_f32 v{r}, v{r}, v{r}\nv_lshlrev_b32 v{r}, 16, v{r}")

def layernorm(a, X, P, region):
    S, D = T+12, T+13
    a(f"v_add_f32 v{S}, v{X}, v{X+1}")
    for i in range(2, 8): a(f"v_add_f32 v{S}, v{S}, v{X+i}")
    rowsum(a, S, region)
    a(f"v_mul_f32 v{S}, {f2u(1/640):#x}, v{S}")
    Q = T+14
    a(f"v_sub_f32 v{D}, v{X}, v{S}\nv_mul_f32 v{Q}, v{D}, v{D}")
    for i in range(1, 8): a(f"v_sub_f32 v{D}, v{X+i}, v{S}\nv_fmac_f32 v{Q}, v{D}, v{D}")
    rowsum(a, Q, region + 1)
    a(f"v_mul_f32 v{Q}, {f2u(1/640):#x}, v{Q}")
    rnd1(a, S); rnd1(a, Q)
    a(f"v_add_f32 v{Q}, {f2u(1e-5):#x}, v{Q}"); rnd1(a, Q)
    a(f"v_sqrt_f32 v{Q}, v{Q}\ns_nop 0"); rnd1(a, Q)
    a(f"v_rcp_f32 v{Q}, v{Q}")
    for i in range(8): a(f"v_sub_f32 v{X+i}, v{X+i}, v{S}")
    rnd(a, X, P)
    for i in range(8): a(f"v_mul_f32 v{X+i}, v{X+i}, v{Q}")
    rnd(a, X, P)

def modulate(a, X, P, U, B):
    for i in range(4):
        unpack(a, T, U+i)
        a(f"v_mul_f32 v{X+2*i}, v{X+2*i}, v{T}\nv_mul_f32 v{X+2*i+1}, v{X+2*i+1}, v{T+1}")
    rnd(a, X, P)
    for i in range(4):
        unpack(a, T, B+i)
        a(f"v_add_f32 v{X+2*i}, v{X+2*i}, v{T}\nv_add_f32 v{X+2*i+1}, v{X+2*i+1}, v{T+1}")

def k_ln1():
    name = "ln1_kernel"; a = Asm(); row_setup(a, name)
    X, P, XR, U, B = 24, 32, 36, 40, 44
    a.vm(f"buffer_load_dwordx2 {vr(XR,2)}, v{vX}, s[8:11], s28 offen", 'x')
    a.vm(f"buffer_load_dwordx2 {vr(XR+2,2)}, v{vX}, s[8:11], s28 offen offset:32", 'x')
    a.vm(f"buffer_load_dwordx4 {vr(U,4)}, v{vM}, s[12:15], 0 offen offset:1280", 'm')
    a.vm(f"buffer_load_dwordx4 {vr(B,4)}, v{vM}, s[12:15], 0 offen", 'm')
    srd(a, 16, 4, WS_H, FRAG_BYTES)
    a.wait(vm=['x'])
    for i in range(4): unpack(a, X+2*i, XR+i)
    layernorm(a, X, P, 0)
    a.wait(vm=['m'])
    modulate(a, X, P, U, B)
    for i in range(4): a(f"v_cvt_pk_bf16_f32 v{P+i}, v{X+2*i}, v{X+2*i+1}")
    a(f"buffer_store_dwordx4 {vr(P,4)}, v{vF}, s[16:19], s28 offen")
    return fin(a, name, 48, 256, 640, 768)

def k_ln2(NP=8):
    name = "ln2_kernel"; a = Asm(); row_setup(a, name)
    X, P, XR, GA, U, B, PT = 24, 32, 36, 40, 44, 48, 64
    P2, P3 = 52, 56
    srd(a, 16, 4, WS_PART, NP*FRAG_BYTES)
    a("s_mov_b32 s29, s28")
    for p in range(NP):
        a.vm(f"buffer_load_dwordx4 {vr(PT+4*p,4)}, v{vF}, s[16:19], s29 offen", ('p', p))
        if p < NP-1: a(f"s_add_u32 s29, s29, {FRAG_BYTES}")
    a.vm(f"buffer_load_dwordx4 {vr(GA,4)}, v{vM}, s[12:15], 0 offen offset:2560", 'g')
    a.vm(f"buffer_load_dwordx2 {vr(XR,2)}, v{vX}, s[8:11], s28 offen", 'x')
    a.vm(f"buffer_load_dwordx2 {vr(XR+2,2)}, v{vX}, s[8:11], s28 offen offset:32", 'x')
    a("s_movk_i32 s30, 5120")
    a.vm(f"buffer_load_dwordx4 {vr(U,4)}, v{vM}, s[12:15], s30 offen", 'm')
    a.vm(f"buffer_load_dwordx4 {vr(B,4)}, v{vM}, s[12:15], 0 offen offset:3840", 'm')
    srd(a, 20, 4, WS_X2, FRAG_BYTES); srd(a, 24, 4, WS_HB, FRAG_BYTES); srd(a, 32, 4, WS_T, FRAG_BYTES)
    for p in range(NP):
        a.wait(vm=[('p', p)])
        for i in range(4):
            if p == 0: unpack(a, X+2*i, PT+i)
            else:
                unpack(a, T+2*i, PT+4*p+i)
                a(f"v_pk_add_f32 {vr(X+2*i,2)}, {vr(X+2*i,2)}, {vr(T+2*i,2)}")
    rnd(a, X, P)
    a.wait(vm=['g', 'x'])
    for i in range(4):
        unpack(a, T, GA+i)
        a(f"v_mul_f32 v{X+2*i}, v{X+2*i}, v{T}\nv_mul_f32 v{X+2*i+1}, v{X+2*i+1}, v{T+1}")
    rnd(a, X, P)
    for i in range(4):
        unpack(a, T, XR+i)
        a(f"v_add_f32 v{X+2*i}, v{X+2*i}, v{T}\nv_add_f32 v{X+2*i+1}, v{X+2*i+1}, v{T+1}")
    rnd(a, X, P2)
    a.vm(f"buffer_store_dwordx4 {vr(P2,4)}, v{vF}, s[20:23], s28 offen", 'st')
    layernorm(a, X, P, 0)
    a.wait(vm=['m'])
    modulate(a, X, P, U, B)
    rnd(a, X, P3)
    a.vm(f"buffer_store_dwordx4 {vr(P3,4)}, v{vF}, s[24:27], s28 offen", 'st')
    layernorm(a, X, P, 2)
    a.vm(f"buffer_store_dwordx4 {vr(P,4)}, v{vF}, s[32:35], s28 offen", 'st')
    return fin(a, name, 96, 256, 640, 1536)
```

```python
import sys
from attn import gen_attn, Cfg, LDS_BYTES
from gemm import *
from small import *
HEAD = open("adaLN_cond__mha_block_cached__mixer_s_mlp__prompt.s.ref").read().split("; Override launch")[0]
def k_attn(stamps=False, **kw):
    p = dict(dma_gap=8); p.update(kw)
    txt, desc, loop = gen_attn(Cfg(stamps=stamps, **p))
    return dict(name="attn_kernel", text=txt, desc=desc, launch=f"; @launch kernel=attn_kernel grid=(256,1,1) block=(256,1,1) lds={LDS_BYTES}")
def assemble(ks, path):
    out = HEAD + "\n".join(k['launch'] for k in ks) + '\n.amdgcn_target "amdgcn-amd-amdhsa--gfx950"\n'
    seen = set(); body = ""; desc = ""
    for k in ks:
        if k['name'] in seen: continue
        seen.add(k['name']); body += k['text']; desc += k['desc']
    open(path, "w").write(out + body + desc)
def full(stamps=False, opts={}):
    o = lambda n: opts.get(n, {})
    return [k_mod(), k_ln1(), k_attn(stamps, **o('attn')), k_oproj(stamps, **o('oproj')), k_ln2(), k_gemm1(stamps, **o('g1')), k_gemm2(stamps, **o('g2')), k_gemm3(stamps, **o('g3')), k_gemm4(stamps, **o('g4'))]
if __name__ == "__main__":
    assemble(full(True), "full_dbg.s")
    assemble(full(False), "full.s")
```
